```python
import torch

def _softmax(x, axis=-1):
    return torch.softmax(x, dim=axis)
def _gelu(x):
    return torch.nn.functional.gelu(x, approximate="tanh")
def _silu(x):
    return torch.nn.functional.silu(x)
def _sigmoid(x):
    return torch.sigmoid(x)
def _layernorm(x, axis=-1, eps=1e-5):
    m = x.mean(dim=axis, keepdim=True)
    v = x.var(dim=axis, keepdim=True, unbiased=False)
    return (x - m) / torch.sqrt(v + eps)
def _scatter_add(tgt, idx, src, axis=0):
    return tgt.clone().index_add_(axis, idx, src)
def _segment_sum(src, seg, n):
    out = torch.zeros((n,) + src.shape[1:], dtype=src.dtype)
    return out.index_add_(0, seg, src)
def _pad(x, pw):
    flat = tuple(v for pair in reversed(pw) for v in pair)
    return torch.nn.functional.pad(x, flat)

kernel_name = 'standalone__sliding_block_cached__sampling'

def setup_inputs():

    _w = (lambda a: (lambda t: t.to(torch.bfloat16) if t.is_floating_point() else t)(torch.as_tensor(a)))
    B, Sq, D = 16, 1, 576
    Hq, Hkv, Sk, Dh = 32, 16, 4096, 128
    assert Hq % Hkv == 0, (Hq, Hkv)
    return {
        "x": _w((lambda *s: torch.randn(*s, dtype=torch.bfloat16) * 0.8)(B, Sq, D)),
        "k_cache": _w((lambda *s: torch.randn(*s, dtype=torch.bfloat16) * 0.8)(B, Hkv, Sk, Dh)),
        "v_cache": _w((lambda *s: torch.randn(*s, dtype=torch.bfloat16) * 0.05)(B, Hkv, Sk, Dh)),
        "wq": _w((lambda *s: torch.randn(*s, dtype=torch.bfloat16) * 0.8)(D, Hq * Dh) * (D ** -0.5)),
        "wo": _w((lambda *s: torch.randn(*s, dtype=torch.bfloat16) * 0.05)(Hq * Dh, D) * ((Hq * Dh) ** -0.5)),
    }

def reference(x, k_cache, v_cache, wq, wo):
    B, Sq, D = x.shape
    Hq, Dh = 32, 128
    Hkv, Sk = k_cache.shape[1], k_cache.shape[2]
    W = min(4096, max(256, Sk // 4))
    rep = Hq // Hkv
    q = (lambda x, *d: x.permute(*d))((x @ wq).reshape(B, Sq, Hq, Dh), 0, 2, 1, 3)
    k = (lambda x, n, axis: torch.repeat_interleave(x, n, dim=axis))(k_cache[:, :, Sk - W:, :], rep, axis=1)
    v = (lambda x, n, axis: torch.repeat_interleave(x, n, dim=axis))(v_cache[:, :, Sk - W:, :], rep, axis=1)
    scores = torch.einsum("bhqd,bhkd->bhqk", q, k) * (Dh ** -0.5)
    p = _softmax(scores, axis=-1)
    o = torch.einsum("bhqk,bhkd->bhqd", p, v)
    return (lambda x, *d: x.permute(*d))(o, 0, 2, 1, 3).reshape(B, Sq, Hq * Dh) @ wo
```

```python
import sys

KNAME = "standalone__sliding_block_cached__sampling_kernel"

KR = 0
WOS = 98304
WQS = 131072
QR = 149504
OP = 131072
PB = 139264
QB = 157696
ST = 158208
FL = 158336
XR = 0
LDS_BYTES = 158464

WS_QP = 0
WS_OM = 1 << 20
WS_EP = (1 << 20) + (768 << 10)
WS_PM = 2 << 20
WS_BYTES = 4 << 20
WS_STAMP = 512 << 20

SPIN_MAX = 200000
QSPIN_MAX = 60


class Path:
    def __init__(self, out, q=None):
        self.out = out
        self.q = list(q) if q else []
        self.count = 0

    def a(self, s):
        self.out.append("  " + s)

    def vm(self, s, tag):
        self.a(s)
        self.count += 1
        self.q.append(tag)
        assert len(self.q) <= 63, "too many outstanding vmem ops"

    def wait(self, tag, extra=""):
        idx = max([i for i, t in enumerate(self.q) if t == tag], default=-1)
        if idx < 0:
            if extra:
                self.a(f"s_waitcnt {extra}")
            return
        n = len(self.q) - 1 - idx
        self.a(f"s_waitcnt vmcnt({n}) {extra}".rstrip())
        self.q = self.q[idx + 1:]

    def throttle(self, w):
        if len(self.q) > w:
            self.a(f"s_waitcnt vmcnt({w})")
            self.q = self.q[len(self.q) - w:] if w else []

    def pending(self, tag):
        return tag in self.q


def gen(stamps=False, fast=True, force_fallback=False, wk0=4, wk1=5, wv=5, nslow=8, qpolls=(7, 10, 13, 16, 20, 24),
        w1add=1, w0add=1, fsleep=2, vburst=8, abl=(), qst='', qld=' sc1', xld=' nt', ast='', ald=' sc1',
        bst=' sc1', bld=' sc1', wo_at=12):
    out = []
    A = lambda s: out.append("  " + s)
    LBL = lambda s: out.append(s + ":")
    out.append(f"; @launch grid=(256,1,1) block=(512,1,1) lds={LDS_BYTES}")
    out.append('.amdgcn_target "amdgcn-amd-amdhsa--gfx950"')
    out.append(".text")
    out.append(f".globl {KNAME}")
    out.append(".p2align 8")
    out.append(f".type {KNAME},@function")
    LBL(KNAME)

    SK, SV, SWQ, SX, SWO, SWS, SOUT = "s[20:23]", "s[24:27]", "s[28:31]", "s[32:35]", "s[36:39]", "s[40:43]", "s[48:51]"

    def sreg(i):
        return (66 + 2 * i if i < 3 else 100) if i < 4 else 88 + 2 * (i - 4)

    def stamp(i):
        if stamps:
            A(f"s_memrealtime s[{sreg(i)}:{sreg(i)+1}]")

    A("s_cmp_ge_u32 s2, 256")
    A("s_cbranch_scc1 L_end")
    A("s_load_dwordx16 s[4:19], s[0:1], 0")
    stamp(0)
    if stamps:
        for i in range(4, 10):
            A(f"s_mov_b64 s[{sreg(i)}:{sreg(i)+1}], 0")
        A("s_mov_b32 s64, 0")
    A("v_and_b32 v1, 63, v0")
    A("v_lshrrev_b32 v2, 6, v0")
    A("s_and_b32 s52, s2, 15")
    A("v_readfirstlane_b32 s3, v2")
    A("s_lshr_b32 s53, s2, 4")
    A("v_and_b32 v2, 15, v1")
    A("v_lshrrev_b32 v3, 4, v1")
    A("v_lshrrev_b32 v52, 1, v1")
    A("v_lshlrev_b32 v52, 13, v52")
    A("v_and_b32 v13, 1, v1")
    A("v_lshl_add_u32 v52, v13, 4, v52")
    A("v_mul_u32_u24 v53, 1152, v2")
    A("v_lshl_add_u32 v53, v3, 4, v53")
    A("s_mov_b32 s46, s53")
    A("s_mov_b32 s31, 0x20000")
    A("s_mov_b32 s34, 18432")
    A("s_mov_b32 s35, 0x20000")
    A("s_mul_i32 s56, s3, 12288")
    A("s_lshl_b32 s76, s3, 18")
    A("s_add_u32 s77, s76, %d" % (8 << 18))
    A("s_add_u32 s72, s76, %d" % (16 << 18))
    A("s_lshl_b32 s78, s3, 6")
    A("s_add_u32 s79, s78, 512")
    A("s_add_u32 s73, s78, 1024")
    A("s_lshl_b32 s75, s3, 10")
    A("s_add_u32 s75, s75, %d" % WQS)
    A("s_add_u32 s74, s75, 16384")
    A("s_add_u32 s57, s56, 8192")
    A("s_cmp_lt_u32 s3, 2")
    A("s_cselect_b32 s72, s72, 0x7ff00000")
    A("s_cselect_b32 s73, s73, 0x7ff00000")
    A("s_cselect_b32 s74, s74, s57")

    def qtask_srd():
        A("s_lshl_b32 s57, s52, 9")
        A("s_lshl_b32 s58, s46, 5")
        A("s_add_u32 s57, s57, s58")
        A("s_sub_u32 s30, %d, s57" % (0 if "nowq" in abl else 4718592))
        if "nowq" in abl:
            A("s_mov_b32 s30, 0")
        A("s_add_u32 s28, s10, s57")
        A("s_addc_u32 s29, s11, 0")

    def q_loads(p):
        p.a("s_mov_b32 m0, s75")
        p.a("s_lshl_b32 s76, s3, 18")
        p.vm(f"buffer_load_dwordx4 v52, {SWQ}, s76 offen nt lds", "wq")
        p.a("s_add_u32 m0, s75, 8192")
        p.a("s_add_u32 s77, s76, %d" % (8 << 18))
        p.vm(f"buffer_load_dwordx4 v52, {SWQ}, s77 offen nt lds", "wq")
        p.a("s_mov_b32 m0, s74")
        p.a("s_lshl_b32 s78, s3, 6")
        p.vm(f"buffer_load_dwordx4 v52, {SWQ}, s72 offen nt lds", "wq")
        p.vm(f"buffer_load_dwordx4 v[32:35], v53, {SX}, s78 offen{xld}", "wq")
        p.vm(f"buffer_load_dwordx4 v[36:39], v53, {SX}, s78 offen offset:512{xld}", "wq")
        p.vm(f"buffer_load_dwordx4 v[40:43], v53, {SX}, s73 offen{xld}", "wq")

    A("s_waitcnt lgkmcnt(0)")
    A("s_mov_b32 s32, s4")
    A("s_mov_b32 s33, s5")
    qtask_srd()
    p0 = Path(out)
    A("s_setprio 3")
    q_loads(p0)
    A("s_setprio 0")
    A("s_add_u32 s76, s18, %d" % WS_EP)
    A("s_addc_u32 s77, s19, 0")
    A("s_load_dwordx2 s[44:45], s[76:77], 0")
    A("v_xor_b32 v13, v2, v3")
    A("v_lshlrev_b32 v13, 4, v13")
    A("v_lshl_or_b32 v4, v3, 8, v13")
    A("v_xor_b32 v5, 64, v4")
    A("v_xor_b32 v6, 0x80, v4")
    A("v_xor_b32 v7, 0xc0, v4")
    A("s_lshl_b32 s57, s2, 20")
    A("s_add_u32 s57, s57, 0xc0000")
    A("s_lshl_b32 s58, s3, 12")
    A("s_add_u32 s57, s57, s58")
    A("s_sub_u32 s22, 0x40000, s58")
    A("s_mov_b32 s23, 0x20000")
    A("s_add_u32 s20, s6, s57")
    A("s_addc_u32 s21, s7, 0")
    A("s_mov_b32 s54, 0")

    def issue_k1(p, n, force_m0=False):
        bi, i = n // 4, n % 4
        if i == 0 and bi >= 2:
            p.a("s_waitcnt lgkmcnt(0)")
        if i == 0 or force_m0:
            p.a(f"s_add_u32 m0, s56, {(bi % 3) * 4096}")
            p.a("s_nop 0")
        p.vm(f"buffer_load_dwordx4 v{4+i}, {SK}, s54 offen offset:{i*1024} nt lds", f"k{bi}")
        if i == 3:
            p.a("s_add_u32 s54, s54, 0x8000")

    assert wk0 <= 8
    for n in range(wk0):
        issue_k1(p0, n)
    A("v_lshl_or_b32 v8, v2, 8, v13")
    A("v_add_u32 v8, s56, v8")
    A("v_xor_b32 v9, 64, v8")
    A("v_xor_b32 v10, 0x80, v8")
    A("v_xor_b32 v11, 0xc0, v8")
    A("v_lshlrev_b32 v12, 4, v1")
    A("v_mov_b32 v13, %d" % FL)
    A("v_mov_b32 v16, 0")
    A("v_mov_b32 v17, 0")
    A("v_mov_b32 v18, 0")
    A("v_mov_b32 v19, 0")
    A("s_mov_b64 exec, 1")
    A("ds_write_b128 v13, v[16:19]")
    A("s_mov_b64 exec, -1")
    A("s_mov_b32 s26, s22")
    A("s_mov_b32 s27, 0x20000")
    A("s_add_u32 s24, s8, s57")
    A("s_addc_u32 s25, s9, 0")
    A("s_mov_b32 s55, 0")
    A("s_mov_b32 s60, 0x05040100")
    A("s_mov_b32 s61, 0x07060302")
    A("s_mov_b32 s62, 0x3db504f3")
    A("s_mov_b32 s63, 0x3fb8aa3b")
    A("s_getreg_b32 s47, hwreg(HW_REG_XCC_ID)")
    A("s_and_b32 s47, s47, 15")
    A("s_lshl_b32 s58, s52, 8")
    A("s_lshl_b32 s59, s3, 5")
    A("s_add_u32 s58, s58, s59")
    A("s_mul_i32 s58, s58, 1152")
    A("s_lshl_b32 s59, s53, 7")
    A("s_add_u32 s58, s58, s59")
    A("s_cmp_lt_u32 s53, 9")
    A("s_cselect_b32 s38, %d, 0" % (0 if "nowo" in abl else 35840))
    A("s_cselect_b32 s58, s58, 0")
    A("s_mov_b32 s39, 0x20000")
    A("s_add_u32 s36, s12, s58")
    A("s_addc_u32 s37, s13, 0")
    A("v_lshrrev_b32 v14, 3, v1")
    A("v_mul_u32_u24 v14, 1152, v14")
    A("v_and_b32 v13, 7, v1")
    A("v_lshl_add_u32 v14, v13, 4, v14")
    A("s_lshl_b32 s65, s3, 12")
    A("s_add_u32 s65, s65, %d" % WOS)

    def issue_wo1(p, e):
        p.a(f"s_add_u32 m0, s65, {1024*e}")
        p.a(f"s_mov_b32 s57, {8*1152*e}")
        p.vm(f"buffer_load_dwordx4 v14, {SWO}, s57 offen nt lds", "wo")

    A("s_mov_b32 s40, s18")
    A("s_mov_b32 s41, s19")
    A("s_mov_b32 s42, %d" % WS_BYTES)
    A("s_mov_b32 s43, 0x20000")
    A("s_mov_b32 s48, s14")
    A("s_mov_b32 s49, s15")
    A("s_mov_b32 s50, 18432")
    A("s_mov_b32 s51, 0x20000")
    A("v_lshrrev_b32 v54, 2, v2")
    A("v_lshl_add_u32 v54, v3, 3, v54")
    A("v_lshlrev_b32 v54, 5, v54")
    A("v_and_b32 v13, 3, v2")
    A("v_lshl_add_u32 v54, v13, 3, v54")
    A("s_lshl_b32 s59, s3, 10")
    A("s_add_u32 s59, s59, %d" % QR)
    A("v_add_u32 v55, s59, v12")

    def q_compute(p, count=False):
        p.a("v_add_u32 v13, s75, v54")
        p.a("v_add_u32 v15, s74, v54")
        p.a("ds_read_b64_tr_b16 v[96:97], v13")
        p.a("ds_read_b64_tr_b16 v[98:99], v13 offset:128")
        p.a("ds_read_b64_tr_b16 v[100:101], v13 offset:8192")
        p.a("ds_read_b64_tr_b16 v[102:103], v13 offset:8320")
        p.a("ds_read_b64_tr_b16 v[104:105], v15")
        p.a("ds_read_b64_tr_b16 v[106:107], v15 offset:128")
        p.a("s_waitcnt lgkmcnt(4)")
        p.a("v_mfma_f32_16x16x32_bf16 v[48:51], v[96:99], v[32:35], 0")
        p.a("s_waitcnt lgkmcnt(2)")
        p.a("v_mfma_f32_16x16x32_bf16 v[48:51], v[100:103], v[36:39], v[48:51]")
        p.a("s_waitcnt lgkmcnt(0)")
        p.a("v_mfma_f32_16x16x32_bf16 v[48:51], v[104:107], v[40:43], v[48:51]")
        p.a("v_mov_b32 v13, %d" % FL)
        p.a("v_mov_b32 v16, 1")
        p.a("s_nop 6")
        p.a("ds_write_b128 v55, v[48:51]")
        if count:
            p.a("s_mov_b64 exec, 1")
            p.a("ds_add_u32 v13, v16 offset:12")
            p.a("s_mov_b64 exec, -1")

    A("s_waitcnt lgkmcnt(0)")
    A("s_add_u32 s44, s44, 1")
    A("s_addc_u32 s45, s45, 0")
    A("s_barrier")
    p0.wait("wq")
    stamp(4)
    if "noq" in abl:
        A("s_branch L_gen")
    q_compute(p0, True)
    if "nopub" not in abl:
        A("s_cmp_eq_u32 s3, 0")
        A("s_cbranch_scc1 L_w0")
    if "nopoll" not in abl:
        A("s_cmp_eq_u32 s3, 1")
        A("s_cbranch_scc1 L_w1")
    if "nocode" not in abl:
        A("s_lshl_b32 s57, s53, 3")
        A("s_add_u32 s57, s57, s3")
        A("s_cmp_eq_u32 s57, 2")
        A("s_cbranch_scc1 L_w2")
    q0 = list(p0.q)

    def read_k(p, bi):
        for jj in range(4):
            r = 128 + 16 * bi + 4 * jj
            p.a(f"ds_read_b128 v[{r}:{r+3}], v{8+jj} offset:{(bi % 3) * 4096}")

    def vreg(hb):
        return 64 + 16 * hb

    def issue_v1(p, n):
        hb, i = n // 4, n % 4
        r = vreg(hb) + 4 * i
        p.vm(f"buffer_load_dwordx4 v[{r}:{r+3}], v12, {SV}, s55 offen offset:{i*1024} nt", f"v{hb}")
        if i == 3:
            p.a("s_add_u32 s55, s55, 0x8000")

    def q_publish(p, tag):
        p.a("v_add_u32 v13, %d, v12" % QR)
        for w in range(8):
            p.a(f"ds_read_b128 v[{96+4*w}:{99+4*w}], v13 offset:{1024*w}")
        p.a("s_lshl_b32 s57, s52, 14")
        p.a("s_lshl_b32 s58, s46, 6")
        p.a("s_add_u32 s57, s57, s58")
        p.a("v_lshlrev_b32 v13, 10, v2")
        p.a("v_lshl_add_u32 v13, v3, 4, v13")
        p.a("s_add_u32 s58, s45, s47")
        p.a("v_mov_b32 v17, s44")
        p.a("v_mov_b32 v19, s58")
        p.a("s_waitcnt lgkmcnt(6)")
        for r in range(4):
            p.a(f"v_add_f32 v{96+r}, v{96+r}, v{100+r}")
        p.a("s_waitcnt lgkmcnt(4)")
        for r in range(4):
            p.a(f"v_add_f32 v{104+r}, v{104+r}, v{108+r}")
        p.a("s_waitcnt lgkmcnt(2)")
        for r in range(4):
            p.a(f"v_add_f32 v{112+r}, v{112+r}, v{116+r}")
        for r in range(4):
            p.a(f"v_add_f32 v{96+r}, v{96+r}, v{104+r}")
        p.a("s_waitcnt lgkmcnt(0)")
        for r in range(4):
            p.a(f"v_add_f32 v{120+r}, v{120+r}, v{124+r}")
        for r in range(4):
            p.a(f"v_add_f32 v{112+r}, v{112+r}, v{120+r}")
        for r in range(4):
            p.a(f"v_add_f32 v{96+r}, v{96+r}, v{112+r}")
        p.a("v_cvt_pk_bf16_f32 v16, v96, v97")
        p.a("v_cvt_pk_bf16_f32 v18, v98, v99")
        p.vm(f"buffer_store_dwordx4 v[16:19], v13, {SWS}, s57 offen{qst}", tag)

    NVPRE = 8

    def kphase(p, wadd=0, polls=(), poll_issue=None, poll_check=None):
        st = {"read": 0, "poll": 0, "m0": True}

        def service(nissued):
            while st["read"] < 8 and 4 * st["read"] + 4 <= nissued and not p.pending(f"k{st['read']}"):
                read_k(p, st["read"])
                st["read"] += 1
        for n in range(wk0, 32):
            w = (wk0 if n < nslow else wk1) + wadd
            p.throttle(w - 1)
            if st["poll"] and n >= st["poll"] + 2:
                k = p.count - st["mark"]
                poll_check(p, st["poll"], k)
                st["poll"] = 0
            service(n)
            if n in polls and not st["poll"]:
                poll_issue(p, n)
                st["poll"] = n
                st["mark"] = p.count
            if n % 4 == 0 and n // 4 >= 3 and st["read"] <= n // 4 - 3:
                p.wait(f"k{n // 4 - 3}")
                service(n)
            assert n % 4 or n // 4 < 3 or st["read"] > n // 4 - 3
            issue_k1(p, n, force_m0=not st["m0"])
            st["m0"] = True
            if n + 1 == wo_at:
                for e in range(4):
                    p.throttle(w - 1)
                    service(n + 1)
                    issue_wo1(p, e)
                st["m0"] = False
        for n in range(NVPRE):
            p.throttle(wk1 + wadd - 1)
            service(32)
            issue_v1(p, n)
        p.wait("k7")
        service(32)
        assert st["read"] == 8 and st["poll"] == 0
        p.throttle(wk1 - 1)

    LBL("L_gen")
    p = Path(out, q0)
    kphase(p)
    endq = list(p.q)
    p.a("s_branch L_join")

    LBL("L_w2")
    p = Path(out, q0)
    p.a("s_getpc_b64 s[58:59]")
    LBL("L_pc")
    p.a("s_sub_u32 s58, s58, L_pc-%s" % KNAME)
    p.a("s_subb_u32 s59, s59, 0")
    p.a("v_lshlrev_b32 v13, 7, v1")
    p.vm("global_load_dword v16, v13, s[58:59]", "code")
    p.a("v_add_u32 v13, 0x2000, v13")
    p.a("v_min_u32 v13, L_end-%s, v13" % KNAME)
    p.vm("global_load_dword v17, v13, s[58:59]", "code")
    kphase(p)
    assert p.q == endq, (p.q, endq)
    p.a("s_branch L_join")

    LBL("L_w0")
    p = Path(out, q0)
    p.a("s_setprio 3")
    p.a("v_mov_b32 v13, %d" % FL)
    LBL("L_qcnt")
    p.a("ds_read_b32 v16, v13 offset:12")
    p.a("s_waitcnt lgkmcnt(0)")
    p.a("v_readfirstlane_b32 s57, v16")
    p.a("s_cmp_lt_u32 s57, 8")
    p.a("s_cbranch_scc1 L_qcnt")
    q_publish(p, "qst")
    p.a("s_setprio 0")
    stamp(5)
    kphase(p, wadd=w0add)
    assert p.q == endq, (p.q, endq)
    p.a("s_branch L_join")

    LBL("L_w1")
    p = Path(out, q0)

    def q_poll_load(p):
        p.a("s_lshl_b32 s57, s52, 14")
        p.a("s_lshl_b32 s58, s53, 10")
        p.a("s_add_u32 s57, s57, s58")
        p.a(f"buffer_load_dwordx4 v[16:19], v12, {SWS}, s57 offen{qld}")

    def q_check(p):
        p.a("v_subrev_u32 v21, s45, v19")
        p.a("v_xor_b32 v20, s44, v17")
        p.a("v_lshrrev_b32 v22, 4, v21")
        p.a("v_or_b32 v20, v20, v22")
        p.a("v_cmp_ne_u32 vcc, 0, v20")
        p.a("s_nop 1")

    def q_finish(p):
        p.a("v_mov_b32 v17, v18")
        p.a("v_lshlrev_b32 v13, 3, v1")
        p.a("v_add_u32 v13, %d, v13" % QB)
        p.a("ds_write_b64 v13, v[16:17]")

    def q_success(p):
        q_finish(p)
        p.a("v_cmp_ne_u32 vcc, s47, v21")
        p.a("s_nop 1")
        p.a("s_cmp_lg_u64 vcc, 0")
        p.a("s_cselect_b32 s57, 1, 0")
        p.a("v_mov_b32 v56, s57")
        p.a("s_mov_b32 s79, 1")

    def q_flag(p):
        p.a("v_mov_b32 v57, s79")
        p.a("v_mov_b32 v13, %d" % FL)
        p.a("s_waitcnt lgkmcnt(0)")
        p.a("s_mov_b64 exec, 1")
        p.a("ds_write_b64 v13, v[56:57]")
        p.a("s_mov_b64 exec, -1")

    def poll_issue(p, n):
        p.a("s_cmp_lg_u32 s79, 0")
        p.a(f"s_cbranch_scc1 L_pi{n}")
        q_poll_load(p)
        LBL(f"L_pi{n}")

    def poll_check(p, n, k):
        p.a("s_cmp_lg_u32 s79, 0")
        p.a(f"s_cbranch_scc1 L_pc{n}")
        p.a(f"s_waitcnt vmcnt({k})")
        q_check(p)
        if force_fallback:
            p.a(f"s_branch L_pc{n}")
        p.a("s_cmp_lg_u64 vcc, 0")
        p.a(f"s_cbranch_scc1 L_pc{n}")
        q_success(p)
        q_flag(p)
        stamp(6)
        LBL(f"L_pc{n}")

    p.a("s_mov_b32 s79, 0")
    kphase(p, wadd=w1add, polls=qpolls, poll_issue=poll_issue, poll_check=poll_check)
    assert p.q == endq, (p.q, endq)
    if "nopub" in abl:
        p.a("s_branch L_join")
    p.a("s_cmp_lg_u32 s79, 0")
    p.a("s_cbranch_scc1 L_join")
    p.a("s_mov_b32 s64, 0")
    LBL("L_qretry")
    q_poll_load(p)
    p.a("s_waitcnt vmcnt(0)")
    q_check(p)
    if not force_fallback:
        p.a("s_cmp_eq_u64 vcc, 0")
        p.a("s_cbranch_scc1 L_qok")
    p.a("s_add_u32 s64, s64, 1")
    p.a("s_cmp_le_u32 s64, %d" % (QSPIN_MAX if not force_fallback else 1))
    p.a("s_cbranch_scc1 L_qretry")
    p.a("s_mov_b32 s79, 2")
    p.a("v_mov_b32 v56, 1")
    p.a("s_branch L_qflag")
    LBL("L_qok")
    q_success(p)
    LBL("L_qflag")
    q_flag(p)

    LBL("L_join")
    p = Path(out, endq)
    p.a("v_mov_b32 v58, %d" % FL)
    p.a("v_and_b32 v13, 1, v1")
    p.a("v_lshlrev_b32 v13, 8, v13")
    p.a("v_lshl_add_u32 v13, v3, 4, v13")
    p.a("v_add_u32 v14, %d, v13" % QB)
    p.a("s_lshl_b32 s57, s3, 9")
    p.a("s_add_u32 s57, s57, %d" % PB)
    p.a("v_add_u32 v59, s57, v13")
    LBL("L_qwait")
    p.a("ds_read_b64 v[56:57], v58")
    for jj in range(4):
        p.a(f"ds_read_b128 v[{16+4*jj}:{19+4*jj}], v14 offset:{64*jj}")
    p.a("s_waitcnt lgkmcnt(4)")
    p.a("v_readfirstlane_b32 s78, v56")
    p.a("v_readfirstlane_b32 s79, v57")
    if not ({"noq", "nopub", "nopoll"} & set(abl)):
        p.a("s_cmp_eq_u32 s79, 0")
        p.a("s_cbranch_scc1 L_qwait")
        p.a("s_cmp_eq_u32 s79, 2")
        p.a("s_cbranch_scc1 L_fallback")
    LBL("L_qk")
    stamp(1)
    for n in range(8, 8 + vburst):
        issue_v1(p, n)
    p.a("v_mov_b32 v15, v59")
    p.a("s_lshl_b32 s57, s3, 9")
    p.a("s_add_u32 s57, s57, %d" % PB)
    p.a("v_and_b32 v13, 1, v3")
    p.a("v_lshlrev_b32 v13, 8, v13")
    p.a("v_and_b32 v14, 3, v2")
    p.a("v_lshl_add_u32 v13, v14, 4, v13")
    p.a("v_lshrrev_b32 v14, 2, v2")
    p.a("v_lshl_add_u32 v13, v14, 1, v13")
    p.a("v_add_u32 v13, s57, v13")
    p.a("v_and_b32 v14, 1, v3")
    p.a("v_cmp_eq_u32 s[76:77], 1, v14")
    p.a("s_waitcnt lgkmcnt(0)")
    for bi in range(8):
        for jj in range(4):
            c = "0" if jj == 0 else f"v[{32+4*bi}:{35+4*bi}]"
            r = 128 + 16 * bi + 4 * jj
            p.a(f"v_mfma_f32_16x16x32_bf16 v[{32+4*bi}:{35+4*bi}], v[{16+4*jj}:{19+4*jj}], v[{r}:{r+3}], {c}")
    for n in range(8 + vburst, 16):
        issue_v1(p, n)
    p.a("s_nop 7")
    for bi in range(8):
        d = 32 + 4 * bi
        p.a(f"v_cvt_pk_bf16_f32 v{d+2}, v{d}, v{d+1}")
    for bi in range(8):
        d = 32 + 4 * bi
        p.a(f"v_lshlrev_b32 v{d}, 16, v{d+2}")
        p.a(f"v_and_b32 v{d+1}, 0xffff0000, v{d+2}")
    for bi in range(8):
        d = 32 + 4 * bi
        p.a(f"v_mul_f32 v{d}, s62, v{d}")
        p.a(f"v_mul_f32 v{d+1}, s62, v{d+1}")
    for bi in range(8):
        d = 32 + 4 * bi
        p.a(f"v_cvt_pk_bf16_f32 v{d+2}, v{d}, v{d+1}")
    for bi in range(8):
        d = 32 + 4 * bi
        p.a(f"v_lshlrev_b32 v{d}, 16, v{d+2}")
        p.a(f"v_and_b32 v{d+1}, 0xffff0000, v{d+2}")
    for h, m in ((0, 16), (1, 18)):
        p.a(f"v_max3_f32 v{m}, v{32+h}, v{36+h}, v{40+h}")
        p.a(f"v_max3_f32 v{m+1}, v{44+h}, v{48+h}, v{52+h}")
    for h, m in ((0, 16), (1, 18)):
        p.a(f"v_max3_f32 v{m}, v{m}, v{56+h}, v{60+h}")
    for h, m in ((0, 16), (1, 18)):
        p.a(f"v_max_f32 v{m}, v{m}, v{m+1}")
    for sh in (8, 4, 2, 1):
        p.a("s_nop 0")
        for m in (16, 18):
            p.a(f"v_max_f32_dpp v{m}, v{m}, v{m} row_ror:{sh} row_mask:0xf bank_mask:0xf")
    for bi in range(8):
        d = 32 + 4 * bi
        p.a(f"v_sub_f32 v{d}, v{d}, v16")
        p.a(f"v_sub_f32 v{d+1}, v{d+1}, v18")
    for bi in range(8):
        d = 32 + 4 * bi
        p.a(f"v_mul_f32 v{d}, s63, v{d}")
        p.a(f"v_mul_f32 v{d+1}, s63, v{d+1}")
    for bi in range(8):
        d = 32 + 4 * bi
        p.a(f"v_exp_f32 v{d}, v{d}")
        p.a(f"v_exp_f32 v{d+1}, v{d+1}")
    for bi in range(8):
        d = 32 + 4 * bi
        p.a(f"v_cndmask_b32 v{d+2}, v{d}, v{d+1}, s[76:77]")
    for bi in range(8):
        d = 32 + 4 * bi
        p.a(f"v_cvt_pk_bf16_f32 v{d+2}, v{d+2}, v{d+2}")
    for bi in range(8):
        d = 32 + 4 * bi
        p.a(f"ds_write_b16 v13, v{d+2} offset:{(bi >> 1)*64 + (bi & 1)*8}")
    for h, l in ((0, 17), (1, 19)):
        p.a(f"v_add_f32 v{l}, v{32+h}, v{36+h}")
        p.a(f"v_add_f32 v{20+h}, v{40+h}, v{44+h}")
        p.a(f"v_add_f32 v{22+h}, v{48+h}, v{52+h}")
        p.a(f"v_add_f32 v{24+h}, v{56+h}, v{60+h}")
    for h, l in ((0, 17), (1, 19)):
        p.a(f"v_add_f32 v{l}, v{l}, v{20+h}")
        p.a(f"v_add_f32 v{22+h}, v{22+h}, v{24+h}")
    for h, l in ((0, 17), (1, 19)):
        p.a(f"v_add_f32 v{l}, v{l}, v{22+h}")
    for sh in (8, 4, 2, 1):
        p.a("s_nop 0")
        for l in (17, 19):
            p.a(f"v_add_f32_dpp v{l}, v{l}, v{l} row_ror:{sh} row_mask:0xf bank_mask:0xf")
    p.a("s_lshl_b32 s57, s3, 4")
    p.a("s_add_u32 s57, s57, %d" % ST)
    p.a("v_mov_b32 v14, s57")
    p.a("v_mov_b32 v240, v16")
    p.a("v_mov_b32 v241, v18")
    p.a("v_mov_b32 v246, %d" % FL)
    p.a("v_mov_b32 v247, 1")
    p.a("s_mov_b64 exec, 1")
    p.a("ds_write_b128 v14, v[16:19]")
    p.a("ds_add_u32 v246, v247 offset:8")
    p.a("s_mov_b64 exec, -1")
    p.a("s_waitcnt lgkmcnt(0)")
    for mm in range(4):
        p.a(f"ds_read_b128 v[{16+4*mm}:{19+4*mm}], v15 offset:{64*mm}")

    def pv(p, mm):
        def src(i, dw):
            return vreg(2 * mm + (i >> 2)) + 4 * (i & 3) + dw
        tbuf = [192, 196, 200, 204]

        def perms(j):
            tb = tbuf[j % 4]
            for d in range(4):
                p.a(f"v_perm_b32 v{tb+d}, v{src(2*d+1, j >> 1)}, v{src(2*d, j >> 1)}, {'s61' if j & 1 else 's60'}")

        def mf(j):
            tb = tbuf[j % 4]
            c = "0" if mm == 0 else f"v[{32+4*j}:{35+4*j}]"
            p.a(f"v_mfma_f32_16x16x32_bf16 v[{32+4*j}:{35+4*j}], v[{16+4*mm}:{19+4*mm}], v[{tb}:{tb+3}], {c}")
        perms(0)
        for j in range(8):
            if j + 1 < 8:
                perms(j + 1)
            else:
                p.a("s_nop 1")
            mf(j)

    done = 0
    first = True
    for n in range(16, 32):
        p.throttle(wv - 1)
        while done < 3 and not p.pending(f"v{2*done}") and not p.pending(f"v{2*done+1}") and 8 * done + 8 <= n:
            if first:
                p.a("s_waitcnt lgkmcnt(0)")
                first = False
            pv(p, done)
            done += 1
        issue_v1(p, n)
    while done < 3:
        p.wait(f"v{2*done+1}")
        if first:
            p.a("s_waitcnt lgkmcnt(0)")
            first = False
        pv(p, done)
        done += 1
    p.a("v_mov_b32 v14, %d" % ST)
    LBL("L_stwait")
    p.a("ds_read_b32 v247, v246 offset:8")
    for w in range(8):
        p.a(f"ds_read_b128 v[{208+4*w}:{211+4*w}], v14 offset:{16*w}")
    p.a("s_waitcnt lgkmcnt(8)")
    p.a("v_readfirstlane_b32 s57, v247")
    p.a("s_cmp_lt_u32 s57, 8")
    p.a("s_cbranch_scc1 L_stwait")
    p.a("s_waitcnt lgkmcnt(0)")
    for h in range(2):
        M = 244 + h
        p.a(f"v_max3_f32 v{M}, v{208+2*h}, v{212+2*h}, v{216+2*h}")
        p.a(f"v_max3_f32 v{M}, v{M}, v{220+2*h}, v{224+2*h}")
        p.a(f"v_max3_f32 v{M}, v{M}, v{228+2*h}, v{232+2*h}")
        p.a(f"v_max_f32 v{M}, v{M}, v{236+2*h}")
    for h in range(2):
        M = 244 + h
        for w in range(8):
            p.a(f"v_sub_f32 v{208+4*w+2*h}, v{208+4*w+2*h}, v{M}")
        p.a(f"v_sub_f32 v{240+h}, v{240+h}, v{M}")
    for h in range(2):
        for w in range(8):
            p.a(f"v_mul_f32 v{208+4*w+2*h}, s63, v{208+4*w+2*h}")
        p.a(f"v_mul_f32 v{240+h}, s63, v{240+h}")
    for h in range(2):
        for w in range(8):
            p.a(f"v_exp_f32 v{208+4*w+2*h}, v{208+4*w+2*h}")
        p.a(f"v_exp_f32 v{240+h}, v{240+h}")
    for h in range(2):
        p.a(f"v_mul_f32 v{242+h}, v{208+2*h}, v{209+2*h}")
    for w in range(1, 8):
        for h in range(2):
            p.a(f"v_fmac_f32 v{242+h}, v{208+4*w+2*h}, v{209+4*w+2*h}")
    for h in range(2):
        p.a(f"v_rcp_f32 v{242+h}, v{242+h}")
    p.a("s_nop 0")
    for h in range(2):
        p.a(f"v_mul_f32 v{242+h}, v{242+h}, v{240+h}")
    p.a("s_lshl_b32 s57, s3, 10")
    p.a("s_add_u32 s57, s57, %d" % OP)
    p.a("v_lshlrev_b32 v14, 5, v2")
    p.a("v_add_u32 v14, s57, v14")
    p.wait("v7")
    stamp(2)
    pv(p, 3)
    p.a("s_nop 4")
    for j in range(8):
        if j == 6:
            p.a("s_nop 3")
        for h in range(2):
            p.a(f"v_mul_f32 v{64+8*h+j}, v{242+h}, v{32+4*j+h}")
    p.a("s_mov_b64 exec, 0xffff")
    for h in range(2):
        for half in range(2):
            p.a(f"ds_write_b128 v14, v[{64+8*h+4*half}:{67+8*h+4*half}] offset:{512*h+16*half}")
    p.a("s_mov_b64 exec, -1")
    p.a("s_waitcnt lgkmcnt(0)")
    p.a("s_barrier")
    stamp(7)
    if "notail" in abl:
        p.a("s_branch L_fin")
    p.a("s_cmp_eq_u32 s3, 0")
    p.a("s_cbranch_scc1 L_reduce")
    p.a("s_cmp_ge_u32 s53, 9")
    p.a("s_cbranch_scc1 L_fin")
    p.a("s_cmp_ge_u32 s3, 4")
    p.a("s_cbranch_scc1 L_stageA")
    p.a("s_cmp_eq_u32 s3, 1")
    p.a("s_cbranch_scc1 L_final")
    p.a("s_branch L_fin")

    LBL("L_reduce")
    A("s_setprio 3")
    A("v_add_u32 v14, %d, v12" % OP)
    for w in range(8):
        A(f"ds_read_b128 v[{64+4*w}:{67+4*w}], v14 offset:{1024*w}")
    A("s_lshl_b32 s57, s52, 14")
    A("s_lshl_b32 s58, s53, 4")
    A("s_add_u32 s57, s57, s58")
    A("s_add_u32 s57, s57, %d" % WS_OM)
    A("v_lshrrev_b32 v13, 3, v1")
    A("v_lshlrev_b32 v13, 11, v13")
    A("v_and_b32 v15, 1, v1")
    A("v_lshl_add_u32 v13, v15, 10, v13")
    A("v_bfe_u32 v15, v1, 1, 2")
    A("v_lshl_add_u32 v13, v15, 8, v13")
    A("v_mov_b32 v17, s44")
    A("v_mov_b32 v19, s45")
    A("s_waitcnt lgkmcnt(6)")
    for r in range(4):
        A(f"v_add_f32 v{64+r}, v{64+r}, v{68+r}")
    A("s_waitcnt lgkmcnt(4)")
    for r in range(4):
        A(f"v_add_f32 v{72+r}, v{72+r}, v{76+r}")
    A("s_waitcnt lgkmcnt(2)")
    for r in range(4):
        A(f"v_add_f32 v{80+r}, v{80+r}, v{84+r}")
    for r in range(4):
        A(f"v_add_f32 v{64+r}, v{64+r}, v{72+r}")
    A("s_waitcnt lgkmcnt(0)")
    for r in range(4):
        A(f"v_add_f32 v{88+r}, v{88+r}, v{92+r}")
    for r in range(4):
        A(f"v_add_f32 v{80+r}, v{80+r}, v{88+r}")
    for r in range(4):
        A(f"v_add_f32 v{64+r}, v{64+r}, v{80+r}")
    A("v_cvt_pk_bf16_f32 v16, v64, v65")
    A("v_cvt_pk_bf16_f32 v18, v66, v67")
    stamp(8)
    if fast:
        A("s_cmp_eq_u32 s78, 0")
        A("s_cbranch_scc1 L_red_fast")
    A(f"buffer_store_dwordx4 v[16:19], v13, {SWS}, s57 offen sc1")
    A("s_branch L_fin")
    if fast:
        LBL("L_red_fast")
        A(f"buffer_store_dwordx4 v[16:19], v13, {SWS}, s57 offen{ast}")
        A("s_branch L_fin")

    LBL("L_stageA")
    A("s_sub_u32 s59, s3, 4")
    A("s_lshl_b32 s57, s52, 14")
    A("s_lshl_b32 s58, s59, 12")
    A("s_add_u32 s57, s57, s58")
    A("s_add_u32 s57, s57, %d" % WS_OM)

    def sa_loads():
        for ks in range(2):
            for h in range(2):
                r = 64 + 8 * ks + 4 * h
                A(f"buffer_load_dwordx4 v[{r}:{r+3}], v12, {SWS}, s57 offen offset:{2048*ks+1024*h}{ald}")
    sa_loads()
    A("v_lshrrev_b32 v14, 2, v2")
    A("v_lshl_add_u32 v14, v3, 3, v14")
    A("v_lshlrev_b32 v14, 7, v14")
    A("v_and_b32 v13, 3, v2")
    A("v_lshl_add_u32 v14, v13, 3, v14")
    A("s_lshl_b32 s58, s59, 13")
    A("s_add_u32 s58, s58, %d" % WOS)
    A("v_add_u32 v14, s58, v14")
    for t in range(4):
        for ks in range(2):
            for h in range(2):
                r = 128 + 8 * t + 4 * ks + 2 * h
                A(f"ds_read_b64_tr_b16 v[{r}:{r+1}], v14 offset:{4096*ks+512*h+32*t}")
    A("s_lshl_b32 s58, s53, 2")
    A("s_add_u32 s58, s58, s59")
    A("s_lshl_b32 s58, s58, 15")
    A("s_lshl_b32 s80, s52, 9")
    A("s_add_u32 s58, s58, s80")
    A("s_add_u32 s58, s58, %d" % WS_PM)
    A("v_lshrrev_b32 v15, 2, v2")
    A("v_lshlrev_b32 v15, 13, v15")
    A("v_and_b32 v13, 3, v2")
    A("v_lshl_add_u32 v15, v13, 7, v15")
    A("v_lshl_add_u32 v15, v3, 4, v15")
    A("s_lshl_b32 s80, s59, 12")
    A("v_add_u32 v20, s80, v12")
    A("s_lshl_b32 s80, s59, 10")
    A("v_add_u32 v21, s80, v12")
    A("v_mov_b32 v57, s44")
    A("v_mov_b32 v59, s45")
    A("v_mov_b32 v61, s44")
    A("v_mov_b32 v63, s45")
    A("s_mov_b32 s64, 0")
    LBL("L_sa_poll")
    for gi in range(4):
        r = 64 + 4 * gi
        A(f"s_waitcnt vmcnt({3-gi})")
        A(f"v_xor_b32 v17, s44, v{r+1}")
        A(f"v_xor_b32 v18, s45, v{r+3}")
        if gi == 0:
            A("v_or_b32 v16, v17, v18")
        else:
            A("v_or3_b32 v16, v16, v17, v18")
        A(f"v_mov_b32 v{160+2*gi}, v{r}")
        A(f"v_mov_b32 v{161+2*gi}, v{r+2}")
    A("v_cmp_ne_u32 vcc, 0, v16")
    A("s_nop 1")
    A("s_cmp_eq_u64 vcc, 0")
    A("s_cbranch_scc1 L_sa_go")
    A("s_add_u32 s64, s64, 1")
    A("s_cmp_gt_u32 s64, %d" % SPIN_MAX)
    A("s_cbranch_scc1 L_sa_go")
    sa_loads()
    A("s_branch L_sa_poll")
    LBL("L_sa_go")
    stamp(8)
    A("s_waitcnt lgkmcnt(0)")
    for ks in range(2):
        for t in range(4):
            r = 128 + 8 * t + 4 * ks
            c = "0" if ks == 0 else f"v[{32+4*t}:{35+4*t}]"
            A(f"v_mfma_f32_16x16x32_bf16 v[{32+4*t}:{35+4*t}], v[{r}:{r+3}], v[{160+4*ks}:{163+4*ks}], {c}")
    A("s_nop 4")
    for t in range(4):
        if t:
            A("s_nop 0")
        A(f"ds_write_b128 v20, v[{32+4*t}:{35+4*t}] offset:{1024*t}")
    A("s_waitcnt lgkmcnt(0)")
    A("s_barrier")
    for w in range(4):
        A(f"ds_read_b128 v[{32+4*w}:{35+4*w}], v21 offset:{4096*w}")
    A("s_waitcnt lgkmcnt(2)")
    for r in range(4):
        A(f"v_add_f32 v{32+r}, v{32+r}, v{36+r}")
    A("s_waitcnt lgkmcnt(0)")
    for r in range(4):
        A(f"v_add_f32 v{40+r}, v{40+r}, v{44+r}")
    for r in range(4):
        A(f"v_add_f32 v{56+2*r}, v{32+r}, v{40+r}")
    A(f"buffer_store_dwordx4 v[56:59], v15, {SWS}, s58 offen{bst}")
    A(f"buffer_store_dwordx4 v[60:63], v15, {SWS}, s58 offen offset:64{bst}")
    stamp(9)
    A("s_branch L_fin")

    LBL("L_final")
    A("s_mul_i32 s57, s52, 9")
    A("s_add_u32 s57, s57, s53")
    A("s_lshr_b32 s58, s57, 2")
    A("s_and_b32 s59, s57, 3")
    A("s_lshl_b32 s80, s57, 13")
    A("s_add_u32 s80, s80, %d" % WS_PM)
    A("s_add_u32 s81, s80, 4096")
    A("s_mul_i32 s59, s59, 4608")
    A("s_lshl_b32 s58, s58, 5")
    A("s_add_u32 s58, s58, s59")
    A("v_bfe_u32 v15, v1, 3, 2")
    A("v_mul_u32_u24 v15, 1152, v15")
    A("v_and_b32 v17, 3, v1")
    A("v_lshl_add_u32 v15, v17, 3, v15")
    A("v_bfe_u32 v17, v1, 2, 1")
    A("v_lshl_add_u32 v15, v17, 2, v15")
    A("s_mov_b32 s64, 0")
    A("s_mov_b32 s82, 0xff")
    A("s_barrier")
    LBL("L_fi_poll")
    for j in range(8):
        r = 64 + 4 * j
        A(f"s_bitcmp0_b32 s82, {j}")
        A(f"s_cbranch_scc1 L_fl{j}")
        A(f"buffer_load_dwordx4 v[{r}:{r+3}], v12, {SWS}, s{80+(j>>2)} offen offset:{1024*(j&3)}{bld}")
        LBL(f"L_fl{j}")
    A("s_waitcnt vmcnt(0)")
    for j in range(8):
        r = 64 + 4 * j
        A(f"s_bitcmp0_b32 s82, {j}")
        A(f"s_cbranch_scc1 L_fc{j}")
        A(f"v_xor_b32 v17, s44, v{r+1}")
        A(f"v_xor_b32 v18, s45, v{r+3}")
        A("v_or_b32 v16, v17, v18")
        A("v_cmp_ne_u32 vcc, 0, v16")
        A("s_nop 1")
        A("s_cmp_lg_u64 vcc, 0")
        A(f"s_cbranch_scc1 L_fc{j}")
        A(f"s_bitset0_b32 s82, {j}")
        LBL(f"L_fc{j}")
    A("s_cmp_eq_u32 s82, 0")
    A("s_cbranch_scc1 L_fi_go")
    if fsleep:
        A(f"s_sleep {fsleep}")
    A("s_add_u32 s64, s64, 1")
    A("s_cmp_le_u32 s64, %d" % SPIN_MAX)
    A("s_cbranch_scc1 L_fi_poll")
    LBL("L_fi_go")
    stamp(9)
    for d in (0, 2):
        A(f"v_add_f32 v{64+d}, v{64+d}, v{68+d}")
        A(f"v_add_f32 v{72+d}, v{72+d}, v{76+d}")
        A(f"v_add_f32 v{80+d}, v{80+d}, v{84+d}")
        A(f"v_add_f32 v{88+d}, v{88+d}, v{92+d}")
    for d in (0, 2):
        A(f"v_add_f32 v{64+d}, v{64+d}, v{72+d}")
        A(f"v_add_f32 v{80+d}, v{80+d}, v{88+d}")
    A("v_add_f32 v20, v64, v80")
    A("v_add_f32 v21, v66, v82")
    A("v_add_f32 v22, v64, v80")
    A("v_add_f32 v23, v66, v82")
    A("s_nop 1")
    A("v_permlane32_swap_b32 v20, v22")
    A("v_permlane32_swap_b32 v21, v23")
    A("s_nop 1")
    A("v_add_f32 v20, v20, v22")
    A("v_add_f32 v21, v21, v23")
    A("v_cvt_pk_bf16_f32 v16, v20, v21")
    A("s_mov_b32 exec_hi, 0")
    A(f"buffer_store_dword v16, v15, {SOUT}, s58 offen")
    A("s_mov_b64 exec, -1")
    A("s_cmp_lg_u32 s2, 0")
    A("s_cbranch_scc1 L_fin")
    A("v_mov_b32 v20, s44")
    A("v_mov_b32 v21, s45")
    A("v_mov_b32 v13, 0")
    A("s_mov_b32 s57, %d" % WS_EP)
    A("s_mov_b64 exec, 1")
    A(f"buffer_store_dwordx2 v[20:21], v13, {SWS}, s57 offen")
    A("s_mov_b64 exec, -1")
    A("s_branch L_fin")

    LBL("L_fallback")
    pf = Path(out)
    A("s_waitcnt lgkmcnt(0)")
    A("s_mov_b32 s46, 0")
    LBL("L_fb_loop")
    qtask_srd()
    q_loads(pf)
    A("s_waitcnt vmcnt(0)")
    q_compute(pf)
    A("s_waitcnt lgkmcnt(0)")
    A("s_barrier")
    A("s_cmp_lg_u32 s3, 0")
    A("s_cbranch_scc1 L_fb_next")
    q_publish(pf, "x")
    A("s_waitcnt vmcnt(0)")
    LBL("L_fb_next")
    A("s_barrier")
    A("s_add_u32 s46, s46, 1")
    A("s_cmp_lt_u32 s46, 16")
    A("s_cbranch_scc1 L_fb_loop")
    A("s_cmp_lg_u32 s3, 1")
    A("s_cbranch_scc1 L_fb_done")
    q_poll_load(pf)
    A("s_waitcnt vmcnt(0)")
    q_finish(pf)
    LBL("L_fb_done")
    A("s_waitcnt lgkmcnt(0)")
    A("s_mov_b32 s78, 1")
    A("s_barrier")
    for jj in range(4):
        A(f"ds_read_b128 v[{16+4*jj}:{19+4*jj}], v14 offset:{64*jj}")
    A("s_branch L_qk")

    LBL("L_fin")
    if stamps:
        A("s_waitcnt vmcnt(0)")
        stamp(3)
        A("s_lshl_b32 s57, s2, 3")
        A("s_add_u32 s57, s57, s3")
        A("s_lshl_b32 s57, s57, 4")
        A("s_add_u32 s84, s18, 0x%x" % WS_STAMP)
        A("s_addc_u32 s85, s19, 0")
        A("s_mov_b32 s86, 0x400000")
        A("s_mov_b32 s87, 0x20000")
        A("s_waitcnt lgkmcnt(0)")
        A("v_mov_b32 v8, s66")
        A("v_mov_b32 v9, s67")
        A("v_mov_b32 v10, s100")
        A("v_mov_b32 v11, s101")
        for i in (1, 2, 4, 5, 6, 7, 8, 9):
            A(f"s_sub_u32 s{sreg(i)}, s{sreg(i)}, s66")
        A("s_getreg_b32 s58, hwreg(HW_REG_XCC_ID)")
        A("v_mov_b32 v16, s58")
        A("v_mov_b32 v17, s68")
        A("v_mov_b32 v18, s70")
        A("v_mov_b32 v19, s64")
        for k, i in enumerate((4, 5, 6, 7)):
            A(f"v_mov_b32 v{20+k}, s{sreg(i)}")
        for k, i in enumerate((8, 9)):
            A(f"v_mov_b32 v{24+k}, s{sreg(i)}")
        A("v_mov_b32 v26, 0")
        A("v_mov_b32 v27, 0")
        A("v_mov_b32 v12, s57")
        A("s_mov_b32 s58, 0x100000")
        A("s_mov_b32 s59, 0x200000")
        A("s_mov_b32 s57, 0x300000")
        A("s_mov_b64 exec, 1")
        A("buffer_store_dwordx4 v[8:11], v12, s[84:87], 0 offen")
        A("buffer_store_dwordx4 v[16:19], v12, s[84:87], s58 offen")
        A("buffer_store_dwordx4 v[20:23], v12, s[84:87], s59 offen")
        A("buffer_store_dwordx4 v[24:27], v12, s[84:87], s57 offen")
    LBL("L_end")
    A("s_endpgm")
    out.append('.section .rodata,"a"')
    out.append(".p2align 6")
    out.append(f".amdhsa_kernel {KNAME}")
    out.append("  .amdhsa_next_free_vgpr 256")
    out.append("  .amdhsa_next_free_sgpr 102")
    out.append("  .amdhsa_accum_offset 256")
    out.append("  .amdhsa_group_segment_fixed_size 0")
    out.append("  .amdhsa_kernarg_size 64")
    out.append("  .amdhsa_user_sgpr_count 2")
    out.append("  .amdhsa_user_sgpr_kernarg_segment_ptr 1")
    out.append("  .amdhsa_system_sgpr_workgroup_id_x 1")
    out.append("  .amdhsa_float_denorm_mode_32 3")
    out.append(".end_amdhsa_kernel")
    return "\n".join(out) + "\n"


if __name__ == "__main__":
    import json
    base = ("nowo", "nowq", "notail")
    V = {
        "k16": dict(),
        "k16_fb": dict(force_fallback=True),
        "k16_all": dict(abl=base),
        "k16_none": dict(abl=base + ("nopub", "nopoll", "nocode")),
        "k16_notail": dict(abl=("notail",)),
    }
    for n, c in V.items():
        open(f"bench/{n}_st.s", "w").write(gen(stamps=True, **c))
    open("k16.s", "w").write(gen())
    print(" ".join(f"bench/{n}_st.s" for n in V))
    print(json.dumps([f"bench/{n}_st.s" for n in V]))
```

```python
import sys

KNAME = "standalone__sliding_block_cached__sampling_kernel"

KR = 0
WOS = 98304
WQS = 131072
QR = 149504
OP = 131072
PB = 139264
QB = 157696
ST = 158208
FL = 158336
XR = 0
LDS_BYTES = 158464

WS_QP = 0
WS_OM = 1 << 20
WS_EP = (1 << 20) + (768 << 10)
WS_PM = 2 << 20
WS_BYTES = 4 << 20
WS_STAMP = 512 << 20

SPIN_MAX = 200000
QSPIN_MAX = 60


class Path:
    def __init__(self, out, q=None):
        self.out = out
        self.q = list(q) if q else []
        self.count = 0

    def a(self, s):
        self.out.append("  " + s)

    def vm(self, s, tag):
        self.a(s)
        self.count += 1
        self.q.append(tag)
        assert len(self.q) <= 63, "too many outstanding vmem ops"

    def wait(self, tag, extra=""):
        idx = max([i for i, t in enumerate(self.q) if t == tag], default=-1)
        if idx < 0:
            if extra:
                self.a(f"s_waitcnt {extra}")
            return
        n = len(self.q) - 1 - idx
        self.a(f"s_waitcnt vmcnt({n}) {extra}".rstrip())
        self.q = self.q[idx + 1:]

    def throttle(self, w):
        if len(self.q) > w:
            self.a(f"s_waitcnt vmcnt({w})")
            self.q = self.q[len(self.q) - w:] if w else []

    def pending(self, tag):
        return tag in self.q


def gen(stamps=False, fast=True, force_fallback=False, wk0=5, wk1=5, wv=5, nslow=8, wkinit=3, qpolls=(10, 13, 16, 19, 22, 26), qpubs=(8, 9, 10, 12),
        w1add=1, w0add=1, fsleep=2, vburst=8, abl=(), qst='', qld=' sc1', xld=' nt', ast='', ald=' sc1',
        bst=' sc1', bld=' sc1', wo_at=12, yprio=0):
    out = []
    A = lambda s: out.append("  " + s)
    LBL = lambda s: out.append(s + ":")
    out.append(f"; @launch grid=(256,1,1) block=(512,1,1) lds={LDS_BYTES}")
    out.append('.amdgcn_target "amdgcn-amd-amdhsa--gfx950"')
    out.append(".text")
    out.append(f".globl {KNAME}")
    out.append(".p2align 8")
    out.append(f".type {KNAME},@function")
    LBL(KNAME)

    SK, SV, SWQ, SX, SWO, SWS, SOUT = "s[20:23]", "s[24:27]", "s[28:31]", "s[32:35]", "s[36:39]", "s[40:43]", "s[48:51]"

    def sreg(i):
        return (66 + 2 * i if i < 3 else 100) if i < 4 else 88 + 2 * (i - 4)

    def stamp(i):
        if stamps:
            A(f"s_memrealtime s[{sreg(i)}:{sreg(i)+1}]")

    A("s_cmp_ge_u32 s2, 256")
    A("s_cbranch_scc1 L_end")
    A("s_load_dwordx16 s[4:19], s[0:1], 0")
    stamp(0)
    if stamps:
        for i in range(4, 10):
            A(f"s_mov_b64 s[{sreg(i)}:{sreg(i)+1}], 0")
        A("s_mov_b32 s64, 0")
    A("v_and_b32 v1, 63, v0")
    A("v_lshrrev_b32 v2, 6, v0")
    A("s_and_b32 s52, s2, 15")
    A("v_readfirstlane_b32 s3, v2")
    A("s_lshr_b32 s53, s2, 4")
    A("v_and_b32 v2, 15, v1")
    A("v_lshrrev_b32 v3, 4, v1")
    A("v_lshrrev_b32 v52, 1, v1")
    A("v_lshlrev_b32 v52, 13, v52")
    A("v_and_b32 v13, 1, v1")
    A("v_lshl_add_u32 v52, v13, 4, v52")
    A("v_mul_u32_u24 v53, 1152, v2")
    A("v_lshl_add_u32 v53, v3, 4, v53")
    A("s_mov_b32 s46, s53")
    A("s_mov_b32 s31, 0x20000")
    A("s_mov_b32 s34, 18432")
    A("s_mov_b32 s35, 0x20000")
    A("s_mul_i32 s56, s3, 12288")
    A("s_lshl_b32 s76, s3, 18")
    A("s_add_u32 s77, s76, %d" % (8 << 18))
    A("s_add_u32 s72, s76, %d" % (16 << 18))
    A("s_lshl_b32 s78, s3, 6")
    A("s_add_u32 s79, s78, 512")
    A("s_add_u32 s73, s78, 1024")
    A("s_lshl_b32 s75, s3, 10")
    A("s_add_u32 s75, s75, %d" % WQS)
    A("s_add_u32 s74, s75, 16384")
    A("s_add_u32 s57, s56, 8192")
    A("s_cmp_lt_u32 s3, 2")
    A("s_cselect_b32 s72, s72, 0x7ff00000")
    A("s_cselect_b32 s73, s73, 0x7ff00000")
    A("s_cselect_b32 s74, s74, s57")

    def qtask_srd():
        A("s_lshl_b32 s57, s52, 9")
        A("s_lshl_b32 s58, s46, 5")
        A("s_add_u32 s57, s57, s58")
        A("s_sub_u32 s30, %d, s57" % (0 if "nowq" in abl else 4718592))
        if "nowq" in abl:
            A("s_mov_b32 s30, 0")
        A("s_add_u32 s28, s10, s57")
        A("s_addc_u32 s29, s11, 0")

    def q_loads(p):
        p.a("s_mov_b32 m0, s75")
        p.a("s_lshl_b32 s76, s3, 18")
        p.vm(f"buffer_load_dwordx4 v52, {SWQ}, s76 offen nt lds", "wq")
        p.a("s_add_u32 m0, s75, 8192")
        p.a("s_add_u32 s77, s76, %d" % (8 << 18))
        p.vm(f"buffer_load_dwordx4 v52, {SWQ}, s77 offen nt lds", "wq")
        p.a("s_mov_b32 m0, s74")
        p.a("s_lshl_b32 s78, s3, 6")
        p.vm(f"buffer_load_dwordx4 v52, {SWQ}, s72 offen nt lds", "wq")
        p.vm(f"buffer_load_dwordx4 v[32:35], v53, {SX}, s78 offen{xld}", "wq")
        p.vm(f"buffer_load_dwordx4 v[36:39], v53, {SX}, s78 offen offset:512{xld}", "wq")
        p.vm(f"buffer_load_dwordx4 v[40:43], v53, {SX}, s73 offen{xld}", "wq")

    A("s_waitcnt lgkmcnt(0)")
    A("s_mov_b32 s32, s4")
    A("s_mov_b32 s33, s5")
    qtask_srd()
    p0 = Path(out)
    A("s_setprio 3")
    q_loads(p0)
    A("s_setprio 0")
    A("s_add_u32 s76, s18, %d" % WS_EP)
    A("s_addc_u32 s77, s19, 0")
    A("s_load_dwordx2 s[44:45], s[76:77], 0")
    A("v_xor_b32 v13, v2, v3")
    A("v_lshlrev_b32 v13, 4, v13")
    A("v_lshl_or_b32 v4, v3, 8, v13")
    A("v_xor_b32 v5, 64, v4")
    A("v_xor_b32 v6, 0x80, v4")
    A("v_xor_b32 v7, 0xc0, v4")
    A("s_lshl_b32 s57, s2, 20")
    A("s_add_u32 s57, s57, 0xc0000")
    A("s_lshl_b32 s58, s3, 12")
    A("s_add_u32 s57, s57, s58")
    A("s_sub_u32 s22, 0x40000, s58")
    A("s_mov_b32 s23, 0x20000")
    A("s_add_u32 s20, s6, s57")
    A("s_addc_u32 s21, s7, 0")
    A("s_mov_b32 s54, 0")

    def issue_k1(p, n, force_m0=False):
        bi, i = n // 4, n % 4
        if i == 0 and bi >= 2:
            p.a("s_waitcnt lgkmcnt(0)")
        if i == 0 or force_m0:
            p.a(f"s_add_u32 m0, s56, {(bi % 3) * 4096}")
            p.a("s_nop 0")
        p.vm(f"buffer_load_dwordx4 v{4+i}, {SK}, s54 offen offset:{i*1024} nt lds", f"k{bi}")
        if i == 3:
            p.a("s_add_u32 s54, s54, 0x8000")

    assert wk0 <= 8
    for n in range(wkinit):
        issue_k1(p0, n)
    A("v_lshl_or_b32 v8, v2, 8, v13")
    A("v_add_u32 v8, s56, v8")
    A("v_xor_b32 v9, 64, v8")
    A("v_xor_b32 v10, 0x80, v8")
    A("v_xor_b32 v11, 0xc0, v8")
    A("v_lshlrev_b32 v12, 4, v1")
    A("v_mov_b32 v13, %d" % FL)
    A("v_mov_b32 v16, 0")
    A("v_mov_b32 v17, 0")
    A("v_mov_b32 v18, 0")
    A("v_mov_b32 v19, 0")
    A("s_mov_b64 exec, 1")
    A("ds_write_b128 v13, v[16:19]")
    A("s_mov_b64 exec, -1")
    A("s_mov_b32 s26, s22")
    A("s_mov_b32 s27, 0x20000")
    A("s_add_u32 s24, s8, s57")
    A("s_addc_u32 s25, s9, 0")
    A("s_mov_b32 s55, 0")
    A("s_mov_b32 s60, 0x05040100")
    A("s_mov_b32 s61, 0x07060302")
    A("s_mov_b32 s62, 0x3db504f3")
    A("s_mov_b32 s63, 0x3fb8aa3b")
    A("s_getreg_b32 s47, hwreg(HW_REG_XCC_ID)")
    A("s_and_b32 s47, s47, 15")
    A("s_lshl_b32 s58, s52, 8")
    A("s_lshl_b32 s59, s3, 5")
    A("s_add_u32 s58, s58, s59")
    A("s_mul_i32 s58, s58, 1152")
    A("s_lshl_b32 s59, s53, 7")
    A("s_add_u32 s58, s58, s59")
    A("s_cmp_lt_u32 s53, 9")
    A("s_cselect_b32 s38, %d, 0" % (0 if "nowo" in abl else 35840))
    A("s_cselect_b32 s58, s58, 0")
    A("s_mov_b32 s39, 0x20000")
    A("s_add_u32 s36, s12, s58")
    A("s_addc_u32 s37, s13, 0")
    A("v_lshrrev_b32 v14, 3, v1")
    A("v_mul_u32_u24 v14, 1152, v14")
    A("v_and_b32 v13, 7, v1")
    A("v_lshl_add_u32 v14, v13, 4, v14")
    A("s_lshl_b32 s65, s3, 12")
    A("s_add_u32 s65, s65, %d" % WOS)

    def issue_wo1(p, e):
        p.a(f"s_add_u32 m0, s65, {1024*e}")
        p.a(f"s_mov_b32 s57, {8*1152*e}")
        p.vm(f"buffer_load_dwordx4 v14, {SWO}, s57 offen nt lds", "wo")

    A("s_mov_b32 s40, s18")
    A("s_mov_b32 s41, s19")
    A("s_mov_b32 s42, %d" % WS_BYTES)
    A("s_mov_b32 s43, 0x20000")
    A("s_mov_b32 s48, s14")
    A("s_mov_b32 s49, s15")
    A("s_mov_b32 s50, 18432")
    A("s_mov_b32 s51, 0x20000")
    A("v_lshrrev_b32 v54, 2, v2")
    A("v_lshl_add_u32 v54, v3, 3, v54")
    A("v_lshlrev_b32 v54, 5, v54")
    A("v_and_b32 v13, 3, v2")
    A("v_lshl_add_u32 v54, v13, 3, v54")
    A("s_lshl_b32 s59, s3, 10")
    A("s_add_u32 s59, s59, %d" % QR)
    A("v_add_u32 v55, s59, v12")

    def q_compute(p, count=False):
        p.a("v_add_u32 v13, s75, v54")
        p.a("v_add_u32 v15, s74, v54")
        p.a("ds_read_b64_tr_b16 v[96:97], v13")
        p.a("ds_read_b64_tr_b16 v[98:99], v13 offset:128")
        p.a("ds_read_b64_tr_b16 v[100:101], v13 offset:8192")
        p.a("ds_read_b64_tr_b16 v[102:103], v13 offset:8320")
        p.a("ds_read_b64_tr_b16 v[104:105], v15")
        p.a("ds_read_b64_tr_b16 v[106:107], v15 offset:128")
        p.a("s_waitcnt lgkmcnt(4)")
        p.a("v_mfma_f32_16x16x32_bf16 v[48:51], v[96:99], v[32:35], 0")
        p.a("s_waitcnt lgkmcnt(2)")
        p.a("v_mfma_f32_16x16x32_bf16 v[48:51], v[100:103], v[36:39], v[48:51]")
        p.a("s_waitcnt lgkmcnt(0)")
        p.a("v_mfma_f32_16x16x32_bf16 v[48:51], v[104:107], v[40:43], v[48:51]")
        p.a("v_mov_b32 v13, %d" % FL)
        p.a("v_mov_b32 v16, 1")
        p.a("s_nop 6")
        p.a("ds_write_b128 v55, v[48:51]")
        if count:
            p.a("s_mov_b64 exec, 1")
            p.a("ds_add_u32 v13, v16 offset:12")
            p.a("s_mov_b64 exec, -1")

    A("s_waitcnt lgkmcnt(0)")
    A("s_add_u32 s44, s44, 1")
    A("s_addc_u32 s45, s45, 0")
    A("s_barrier")
    if yprio:
        A("s_cmp_lt_u32 s3, 4")
        A("s_cbranch_scc1 L_noprio")
        A(f"s_setprio {yprio}")
        LBL("L_noprio")
    if "nopub" not in abl:
        A("s_cmp_eq_u32 s3, 0")
        A("s_cbranch_scc1 L_w0")
    if "nopoll" not in abl:
        A("s_cmp_eq_u32 s3, 1")
        A("s_cbranch_scc1 L_w1")
    if "nocode" not in abl:
        A("s_lshl_b32 s57, s53, 3")
        A("s_add_u32 s57, s57, s3")
        A("s_cmp_eq_u32 s57, 2")
        A("s_cbranch_scc1 L_w2")
    q0 = list(p0.q)

    def read_k(p, bi):
        for jj in range(4):
            r = 128 + 16 * bi + 4 * jj
            p.a(f"ds_read_b128 v[{r}:{r+3}], v{8+jj} offset:{(bi % 3) * 4096}")

    def vreg(hb):
        return 64 + 16 * hb

    def issue_v1(p, n):
        hb, i = n // 4, n % 4
        r = vreg(hb) + 4 * i
        p.vm(f"buffer_load_dwordx4 v[{r}:{r+3}], v12, {SV}, s55 offen offset:{i*1024} nt", f"v{hb}")
        if i == 3:
            p.a("s_add_u32 s55, s55, 0x8000")

    def q_publish(p, tag):
        p.a("v_add_u32 v13, %d, v12" % QR)
        for w in range(8):
            p.a(f"ds_read_b128 v[{96+4*w}:{99+4*w}], v13 offset:{1024*w}")
        p.a("s_lshl_b32 s57, s52, 14")
        p.a("s_lshl_b32 s58, s46, 6")
        p.a("s_add_u32 s57, s57, s58")
        p.a("v_lshlrev_b32 v13, 10, v2")
        p.a("v_lshl_add_u32 v13, v3, 4, v13")
        p.a("s_add_u32 s58, s45, s47")
        p.a("v_mov_b32 v17, s44")
        p.a("v_mov_b32 v19, s58")
        p.a("s_waitcnt lgkmcnt(6)")
        for r in range(4):
            p.a(f"v_add_f32 v{96+r}, v{96+r}, v{100+r}")
        p.a("s_waitcnt lgkmcnt(4)")
        for r in range(4):
            p.a(f"v_add_f32 v{104+r}, v{104+r}, v{108+r}")
        p.a("s_waitcnt lgkmcnt(2)")
        for r in range(4):
            p.a(f"v_add_f32 v{112+r}, v{112+r}, v{116+r}")
        for r in range(4):
            p.a(f"v_add_f32 v{96+r}, v{96+r}, v{104+r}")
        p.a("s_waitcnt lgkmcnt(0)")
        for r in range(4):
            p.a(f"v_add_f32 v{120+r}, v{120+r}, v{124+r}")
        for r in range(4):
            p.a(f"v_add_f32 v{112+r}, v{112+r}, v{120+r}")
        for r in range(4):
            p.a(f"v_add_f32 v{96+r}, v{96+r}, v{112+r}")
        p.a("v_cvt_pk_bf16_f32 v16, v96, v97")
        p.a("v_cvt_pk_bf16_f32 v18, v98, v99")
        if tag:
            p.vm(f"buffer_store_dwordx4 v[16:19], v13, {SWS}, s57 offen{qst}", tag)
        else:
            p.a(f"buffer_store_dwordx4 v[16:19], v13, {SWS}, s57 offen{qst}")

    NVPRE = 8

    def kphase(p, wadd=0, polls=(), poll_issue=None, poll_check=None, pubs=(), pub_try=None):
        st = {"read": 0, "poll": 0, "m0": True, "qc": False}

        def service(nissued):
            if not st["qc"] and not p.pending("wq"):
                stamp(4)
                q_compute(p, True)
                st["qc"] = True
            while st["read"] < 8 and 4 * st["read"] + 4 <= nissued and not p.pending(f"k{st['read']}"):
                read_k(p, st["read"])
                st["read"] += 1
        for n in range(wkinit, 32):
            w = (wk0 if n < nslow else wk1) + wadd
            nk = sum(1 for t in p.q if t != "wq")
            if nk >= w:
                p.throttle(w - 1)
            if st["poll"] and n >= st["poll"] + 2:
                k = p.count - st["mark"]
                poll_check(p, st["poll"], k)
                st["poll"] = 0
            if n == 8 and not st["qc"]:
                p.wait("wq")
            service(n)
            if n in pubs and st["qc"]:
                pub_try(p, n)
            if n in polls and not st["poll"]:
                poll_issue(p, n)
                st["poll"] = n
                st["mark"] = p.count
            if n % 4 == 0 and n // 4 >= 3 and st["read"] <= n // 4 - 3:
                p.wait(f"k{n // 4 - 3}")
                service(n)
            assert n % 4 or n // 4 < 3 or st["read"] > n // 4 - 3
            issue_k1(p, n, force_m0=not st["m0"])
            st["m0"] = True
            if n + 1 == wo_at:
                for e in range(4):
                    p.throttle(w - 1)
                    service(n + 1)
                    issue_wo1(p, e)
                st["m0"] = False
        for n in range(NVPRE):
            p.throttle(wk1 + wadd - 1)
            service(32)
            issue_v1(p, n)
        p.wait("k7")
        service(32)
        assert st["read"] == 8 and st["poll"] == 0
        p.throttle(wk1 - 1)

    LBL("L_gen")
    p = Path(out, q0)
    kphase(p)
    endq = list(p.q)
    p.a("s_branch L_join")

    LBL("L_w2")
    p = Path(out, q0)
    p.a("s_getpc_b64 s[58:59]")
    LBL("L_pc")
    p.a("s_sub_u32 s58, s58, L_pc-%s" % KNAME)
    p.a("s_subb_u32 s59, s59, 0")
    p.a("v_lshlrev_b32 v13, 7, v1")
    p.vm("global_load_dword v16, v13, s[58:59]", "code")
    p.a("v_add_u32 v13, 0x2000, v13")
    p.a("v_min_u32 v13, L_end-%s, v13" % KNAME)
    p.vm("global_load_dword v17, v13, s[58:59]", "code")
    kphase(p)
    assert p.q == endq, (p.q, endq)
    p.a("s_branch L_join")

    LBL("L_w0")
    p = Path(out, q0)
    p.a("s_mov_b32 s79, 0")

    def pub_try(p, n, last=False):
        p.a("s_cmp_lg_u32 s79, 0")
        p.a(f"s_cbranch_scc1 L_pu{n}")
        p.a("v_mov_b32 v13, %d" % FL)
        LBL(f"L_pw{n}")
        p.a("ds_read_b32 v16, v13 offset:12")
        p.a("s_waitcnt lgkmcnt(0)")
        p.a("v_readfirstlane_b32 s57, v16")
        p.a("s_cmp_lt_u32 s57, 8")
        p.a(f"s_cbranch_scc1 {'L_pw%d' % n if last else 'L_pu%d' % n}")
        p.a("s_setprio 3")
        q_publish(p, None)
        p.a("s_setprio 0")
        p.a("s_mov_b32 s79, 1")
        stamp(5)
        LBL(f"L_pu{n}")

    lastpub = max(qpubs)
    kphase(p, wadd=w0add, pubs=qpubs, pub_try=lambda pp, n: pub_try(pp, n, n == lastpub))
    assert p.q == endq, (p.q, endq)
    p.a("s_branch L_join")

    LBL("L_w1")
    p = Path(out, q0)

    def q_poll_load(p):
        p.a("s_lshl_b32 s57, s52, 14")
        p.a("s_lshl_b32 s58, s53, 10")
        p.a("s_add_u32 s57, s57, s58")
        p.a(f"buffer_load_dwordx4 v[16:19], v12, {SWS}, s57 offen{qld}")

    def q_check(p):
        p.a("v_subrev_u32 v21, s45, v19")
        p.a("v_xor_b32 v20, s44, v17")
        p.a("v_lshrrev_b32 v22, 4, v21")
        p.a("v_or_b32 v20, v20, v22")
        p.a("v_cmp_ne_u32 vcc, 0, v20")
        p.a("s_nop 1")

    def q_finish(p):
        p.a("v_mov_b32 v17, v18")
        p.a("v_lshlrev_b32 v13, 3, v1")
        p.a("v_add_u32 v13, %d, v13" % QB)
        p.a("ds_write_b64 v13, v[16:17]")

    def q_success(p):
        q_finish(p)
        p.a("v_cmp_ne_u32 vcc, s47, v21")
        p.a("s_nop 1")
        p.a("s_cmp_lg_u64 vcc, 0")
        p.a("s_cselect_b32 s57, 1, 0")
        p.a("v_mov_b32 v56, s57")
        p.a("s_mov_b32 s79, 1")

    def q_flag(p):
        p.a("v_mov_b32 v57, s79")
        p.a("v_mov_b32 v13, %d" % FL)
        p.a("s_waitcnt lgkmcnt(0)")
        p.a("s_mov_b64 exec, 1")
        p.a("ds_write_b64 v13, v[56:57]")
        p.a("s_mov_b64 exec, -1")

    def poll_issue(p, n):
        p.a("s_cmp_lg_u32 s79, 0")
        p.a(f"s_cbranch_scc1 L_pi{n}")
        q_poll_load(p)
        LBL(f"L_pi{n}")

    def poll_check(p, n, k):
        p.a("s_cmp_lg_u32 s79, 0")
        p.a(f"s_cbranch_scc1 L_pc{n}")
        p.a(f"s_waitcnt vmcnt({k})")
        q_check(p)
        if force_fallback:
            p.a(f"s_branch L_pc{n}")
        p.a("s_cmp_lg_u64 vcc, 0")
        p.a(f"s_cbranch_scc1 L_pc{n}")
        q_success(p)
        q_flag(p)
        stamp(6)
        LBL(f"L_pc{n}")

    p.a("s_mov_b32 s79, 0")
    kphase(p, wadd=w1add, polls=qpolls, poll_issue=poll_issue, poll_check=poll_check)
    assert p.q == endq, (p.q, endq)
    if "nopub" in abl:
        p.a("s_branch L_join")
    p.a("s_cmp_lg_u32 s79, 0")
    p.a("s_cbranch_scc1 L_join")
    p.a("s_mov_b32 s64, 0")
    LBL("L_qretry")
    q_poll_load(p)
    p.a("s_waitcnt vmcnt(0)")
    q_check(p)
    if not force_fallback:
        p.a("s_cmp_eq_u64 vcc, 0")
        p.a("s_cbranch_scc1 L_qok")
    p.a("s_add_u32 s64, s64, 1")
    p.a("s_cmp_le_u32 s64, %d" % (QSPIN_MAX if not force_fallback else 1))
    p.a("s_cbranch_scc1 L_qretry")
    p.a("s_mov_b32 s79, 2")
    p.a("v_mov_b32 v56, 1")
    p.a("s_branch L_qflag")
    LBL("L_qok")
    q_success(p)
    LBL("L_qflag")
    q_flag(p)

    LBL("L_join")
    p = Path(out, endq)
    p.a("v_mov_b32 v58, %d" % FL)
    p.a("v_and_b32 v13, 1, v1")
    p.a("v_lshlrev_b32 v13, 8, v13")
    p.a("v_lshl_add_u32 v13, v3, 4, v13")
    p.a("v_add_u32 v14, %d, v13" % QB)
    p.a("s_lshl_b32 s57, s3, 9")
    p.a("s_add_u32 s57, s57, %d" % PB)
    p.a("v_add_u32 v59, s57, v13")
    LBL("L_qwait")
    p.a("ds_read_b64 v[56:57], v58")
    for jj in range(4):
        p.a(f"ds_read_b128 v[{16+4*jj}:{19+4*jj}], v14 offset:{64*jj}")
    p.a("s_waitcnt lgkmcnt(4)")
    p.a("v_readfirstlane_b32 s78, v56")
    p.a("v_readfirstlane_b32 s79, v57")
    if not ({"noq", "nopub", "nopoll"} & set(abl)):
        p.a("s_cmp_eq_u32 s79, 0")
        p.a("s_cbranch_scc1 L_qwait")
        p.a("s_cmp_eq_u32 s79, 2")
        p.a("s_cbranch_scc1 L_fallback")
    LBL("L_qk")
    stamp(1)
    for n in range(8, 8 + vburst):
        issue_v1(p, n)
    p.a("v_mov_b32 v15, v59")
    p.a("s_lshl_b32 s57, s3, 9")
    p.a("s_add_u32 s57, s57, %d" % PB)
    p.a("v_and_b32 v13, 1, v3")
    p.a("v_lshlrev_b32 v13, 8, v13")
    p.a("v_and_b32 v14, 3, v2")
    p.a("v_lshl_add_u32 v13, v14, 4, v13")
    p.a("v_lshrrev_b32 v14, 2, v2")
    p.a("v_lshl_add_u32 v13, v14, 1, v13")
    p.a("v_add_u32 v13, s57, v13")
    p.a("v_and_b32 v14, 1, v3")
    p.a("v_cmp_eq_u32 s[76:77], 1, v14")
    p.a("s_waitcnt lgkmcnt(0)")
    for bi in range(8):
        for jj in range(4):
            c = "0" if jj == 0 else f"v[{32+4*bi}:{35+4*bi}]"
            r = 128 + 16 * bi + 4 * jj
            p.a(f"v_mfma_f32_16x16x32_bf16 v[{32+4*bi}:{35+4*bi}], v[{16+4*jj}:{19+4*jj}], v[{r}:{r+3}], {c}")
    for n in range(8 + vburst, 16):
        issue_v1(p, n)
    p.a("s_nop 7")
    for bi in range(8):
        d = 32 + 4 * bi
        p.a(f"v_cvt_pk_bf16_f32 v{d+2}, v{d}, v{d+1}")
    for bi in range(8):
        d = 32 + 4 * bi
        p.a(f"v_lshlrev_b32 v{d}, 16, v{d+2}")
        p.a(f"v_and_b32 v{d+1}, 0xffff0000, v{d+2}")
    for bi in range(8):
        d = 32 + 4 * bi
        p.a(f"v_mul_f32 v{d}, s62, v{d}")
        p.a(f"v_mul_f32 v{d+1}, s62, v{d+1}")
    for bi in range(8):
        d = 32 + 4 * bi
        p.a(f"v_cvt_pk_bf16_f32 v{d+2}, v{d}, v{d+1}")
    for bi in range(8):
        d = 32 + 4 * bi
        p.a(f"v_lshlrev_b32 v{d}, 16, v{d+2}")
        p.a(f"v_and_b32 v{d+1}, 0xffff0000, v{d+2}")
    for h, m in ((0, 16), (1, 18)):
        p.a(f"v_max3_f32 v{m}, v{32+h}, v{36+h}, v{40+h}")
        p.a(f"v_max3_f32 v{m+1}, v{44+h}, v{48+h}, v{52+h}")
    for h, m in ((0, 16), (1, 18)):
        p.a(f"v_max3_f32 v{m}, v{m}, v{56+h}, v{60+h}")
    for h, m in ((0, 16), (1, 18)):
        p.a(f"v_max_f32 v{m}, v{m}, v{m+1}")
    for sh in (8, 4, 2, 1):
        p.a("s_nop 0")
        for m in (16, 18):
            p.a(f"v_max_f32_dpp v{m}, v{m}, v{m} row_ror:{sh} row_mask:0xf bank_mask:0xf")
    for bi in range(8):
        d = 32 + 4 * bi
        p.a(f"v_sub_f32 v{d}, v{d}, v16")
        p.a(f"v_sub_f32 v{d+1}, v{d+1}, v18")
    for bi in range(8):
        d = 32 + 4 * bi
        p.a(f"v_mul_f32 v{d}, s63, v{d}")
        p.a(f"v_mul_f32 v{d+1}, s63, v{d+1}")
    for bi in range(8):
        d = 32 + 4 * bi
        p.a(f"v_exp_f32 v{d}, v{d}")
        p.a(f"v_exp_f32 v{d+1}, v{d+1}")
    for bi in range(8):
        d = 32 + 4 * bi
        p.a(f"v_cndmask_b32 v{d+2}, v{d}, v{d+1}, s[76:77]")
    for bi in range(8):
        d = 32 + 4 * bi
        p.a(f"v_cvt_pk_bf16_f32 v{d+2}, v{d+2}, v{d+2}")
    for bi in range(8):
        d = 32 + 4 * bi
        p.a(f"ds_write_b16 v13, v{d+2} offset:{(bi >> 1)*64 + (bi & 1)*8}")
    for h, l in ((0, 17), (1, 19)):
        p.a(f"v_add_f32 v{l}, v{32+h}, v{36+h}")
        p.a(f"v_add_f32 v{20+h}, v{40+h}, v{44+h}")
        p.a(f"v_add_f32 v{22+h}, v{48+h}, v{52+h}")
        p.a(f"v_add_f32 v{24+h}, v{56+h}, v{60+h}")
    for h, l in ((0, 17), (1, 19)):
        p.a(f"v_add_f32 v{l}, v{l}, v{20+h}")
        p.a(f"v_add_f32 v{22+h}, v{22+h}, v{24+h}")
    for h, l in ((0, 17), (1, 19)):
        p.a(f"v_add_f32 v{l}, v{l}, v{22+h}")
    for sh in (8, 4, 2, 1):
        p.a("s_nop 0")
        for l in (17, 19):
            p.a(f"v_add_f32_dpp v{l}, v{l}, v{l} row_ror:{sh} row_mask:0xf bank_mask:0xf")
    p.a("s_lshl_b32 s57, s3, 4")
    p.a("s_add_u32 s57, s57, %d" % ST)
    p.a("v_mov_b32 v14, s57")
    p.a("v_mov_b32 v240, v16")
    p.a("v_mov_b32 v241, v18")
    p.a("v_mov_b32 v246, %d" % FL)
    p.a("v_mov_b32 v247, 1")
    p.a("s_mov_b64 exec, 1")
    p.a("ds_write_b128 v14, v[16:19]")
    p.a("ds_add_u32 v246, v247 offset:8")
    p.a("s_mov_b64 exec, -1")
    p.a("s_waitcnt lgkmcnt(0)")
    for mm in range(4):
        p.a(f"ds_read_b128 v[{16+4*mm}:{19+4*mm}], v15 offset:{64*mm}")

    def pv(p, mm):
        def src(i, dw):
            return vreg(2 * mm + (i >> 2)) + 4 * (i & 3) + dw
        tbuf = [192, 196, 200, 204]

        def perms(j):
            tb = tbuf[j % 4]
            for d in range(4):
                p.a(f"v_perm_b32 v{tb+d}, v{src(2*d+1, j >> 1)}, v{src(2*d, j >> 1)}, {'s61' if j & 1 else 's60'}")

        def mf(j):
            tb = tbuf[j % 4]
            c = "0" if mm == 0 else f"v[{32+4*j}:{35+4*j}]"
            p.a(f"v_mfma_f32_16x16x32_bf16 v[{32+4*j}:{35+4*j}], v[{16+4*mm}:{19+4*mm}], v[{tb}:{tb+3}], {c}")
        perms(0)
        for j in range(8):
            if j + 1 < 8:
                perms(j + 1)
            else:
                p.a("s_nop 1")
            mf(j)

    done = 0
    first = True
    for n in range(16, 32):
        p.throttle(wv - 1)
        while done < 3 and not p.pending(f"v{2*done}") and not p.pending(f"v{2*done+1}") and 8 * done + 8 <= n:
            if first:
                p.a("s_waitcnt lgkmcnt(0)")
                first = False
            pv(p, done)
            done += 1
        issue_v1(p, n)
    while done < 3:
        p.wait(f"v{2*done+1}")
        if first:
            p.a("s_waitcnt lgkmcnt(0)")
            first = False
        pv(p, done)
        done += 1
    p.a("v_mov_b32 v14, %d" % ST)
    LBL("L_stwait")
    p.a("ds_read_b32 v247, v246 offset:8")
    for w in range(8):
        p.a(f"ds_read_b128 v[{208+4*w}:{211+4*w}], v14 offset:{16*w}")
    p.a("s_waitcnt lgkmcnt(8)")
    p.a("v_readfirstlane_b32 s57, v247")
    p.a("s_cmp_lt_u32 s57, 8")
    p.a("s_cbranch_scc1 L_stwait")
    p.a("s_waitcnt lgkmcnt(0)")
    for h in range(2):
        M = 244 + h
        p.a(f"v_max3_f32 v{M}, v{208+2*h}, v{212+2*h}, v{216+2*h}")
        p.a(f"v_max3_f32 v{M}, v{M}, v{220+2*h}, v{224+2*h}")
        p.a(f"v_max3_f32 v{M}, v{M}, v{228+2*h}, v{232+2*h}")
        p.a(f"v_max_f32 v{M}, v{M}, v{236+2*h}")
    for h in range(2):
        M = 244 + h
        for w in range(8):
            p.a(f"v_sub_f32 v{208+4*w+2*h}, v{208+4*w+2*h}, v{M}")
        p.a(f"v_sub_f32 v{240+h}, v{240+h}, v{M}")
    for h in range(2):
        for w in range(8):
            p.a(f"v_mul_f32 v{208+4*w+2*h}, s63, v{208+4*w+2*h}")
        p.a(f"v_mul_f32 v{240+h}, s63, v{240+h}")
    for h in range(2):
        for w in range(8):
            p.a(f"v_exp_f32 v{208+4*w+2*h}, v{208+4*w+2*h}")
        p.a(f"v_exp_f32 v{240+h}, v{240+h}")
    for h in range(2):
        p.a(f"v_mul_f32 v{242+h}, v{208+2*h}, v{209+2*h}")
    for w in range(1, 8):
        for h in range(2):
            p.a(f"v_fmac_f32 v{242+h}, v{208+4*w+2*h}, v{209+4*w+2*h}")
    for h in range(2):
        p.a(f"v_rcp_f32 v{242+h}, v{242+h}")
    p.a("s_nop 0")
    for h in range(2):
        p.a(f"v_mul_f32 v{242+h}, v{242+h}, v{240+h}")
    p.a("s_lshl_b32 s57, s3, 10")
    p.a("s_add_u32 s57, s57, %d" % OP)
    p.a("v_lshlrev_b32 v14, 5, v2")
    p.a("v_add_u32 v14, s57, v14")
    p.wait("v7")
    stamp(2)
    pv(p, 3)
    p.a("s_nop 4")
    for j in range(8):
        if j == 6:
            p.a("s_nop 3")
        for h in range(2):
            p.a(f"v_mul_f32 v{64+8*h+j}, v{242+h}, v{32+4*j+h}")
    p.a("s_mov_b64 exec, 0xffff")
    for h in range(2):
        for half in range(2):
            p.a(f"ds_write_b128 v14, v[{64+8*h+4*half}:{67+8*h+4*half}] offset:{512*h+16*half}")
    p.a("s_mov_b64 exec, -1")
    p.a("s_waitcnt lgkmcnt(0)")
    p.a("s_barrier")
    stamp(7)
    if "notail" in abl:
        p.a("s_branch L_fin")
    p.a("s_cmp_eq_u32 s3, 0")
    p.a("s_cbranch_scc1 L_reduce")
    p.a("s_cmp_ge_u32 s53, 9")
    p.a("s_cbranch_scc1 L_fin")
    p.a("s_cmp_ge_u32 s3, 4")
    p.a("s_cbranch_scc1 L_stageA")
    p.a("s_cmp_eq_u32 s3, 1")
    p.a("s_cbranch_scc1 L_final")
    p.a("s_branch L_fin")

    LBL("L_reduce")
    A("s_setprio 3")
    A("v_add_u32 v14, %d, v12" % OP)
    for w in range(8):
        A(f"ds_read_b128 v[{64+4*w}:{67+4*w}], v14 offset:{1024*w}")
    A("s_lshl_b32 s57, s52, 14")
    A("s_lshl_b32 s58, s53, 4")
    A("s_add_u32 s57, s57, s58")
    A("s_add_u32 s57, s57, %d" % WS_OM)
    A("v_lshrrev_b32 v13, 3, v1")
    A("v_lshlrev_b32 v13, 11, v13")
    A("v_and_b32 v15, 1, v1")
    A("v_lshl_add_u32 v13, v15, 10, v13")
    A("v_bfe_u32 v15, v1, 1, 2")
    A("v_lshl_add_u32 v13, v15, 8, v13")
    A("v_mov_b32 v17, s44")
    A("v_mov_b32 v19, s45")
    A("s_waitcnt lgkmcnt(6)")
    for r in range(4):
        A(f"v_add_f32 v{64+r}, v{64+r}, v{68+r}")
    A("s_waitcnt lgkmcnt(4)")
    for r in range(4):
        A(f"v_add_f32 v{72+r}, v{72+r}, v{76+r}")
    A("s_waitcnt lgkmcnt(2)")
    for r in range(4):
        A(f"v_add_f32 v{80+r}, v{80+r}, v{84+r}")
    for r in range(4):
        A(f"v_add_f32 v{64+r}, v{64+r}, v{72+r}")
    A("s_waitcnt lgkmcnt(0)")
    for r in range(4):
        A(f"v_add_f32 v{88+r}, v{88+r}, v{92+r}")
    for r in range(4):
        A(f"v_add_f32 v{80+r}, v{80+r}, v{88+r}")
    for r in range(4):
        A(f"v_add_f32 v{64+r}, v{64+r}, v{80+r}")
    A("v_cvt_pk_bf16_f32 v16, v64, v65")
    A("v_cvt_pk_bf16_f32 v18, v66, v67")
    stamp(8)
    if fast:
        A("s_cmp_eq_u32 s78, 0")
        A("s_cbranch_scc1 L_red_fast")
    A(f"buffer_store_dwordx4 v[16:19], v13, {SWS}, s57 offen sc1")
    A("s_branch L_fin")
    if fast:
        LBL("L_red_fast")
        A(f"buffer_store_dwordx4 v[16:19], v13, {SWS}, s57 offen{ast}")
        A("s_branch L_fin")

    def tagpieces():
        A("s_and_b32 s80, s44, 0xfff")
        A("s_bfe_u32 s81, s44, 0xc000c")
        A("s_lshr_b32 s82, s44, 24")
        A("s_lshl_b32 s83, s45, 8")
        A("s_or_b32 s82, s82, s83")
        A("s_and_b32 s82, s82, 0xfff")
        A("s_bfe_u32 s83, s45, 0xc0004")

    LBL("L_stageA")
    A("s_sub_u32 s59, s3, 4")
    A("s_lshl_b32 s57, s52, 14")
    A("s_lshl_b32 s58, s59, 12")
    A("s_add_u32 s57, s57, s58")
    A("s_add_u32 s57, s57, %d" % WS_OM)

    def sa_loads():
        for ks in range(2):
            for h in range(2):
                r = 64 + 8 * ks + 4 * h
                A(f"buffer_load_dwordx4 v[{r}:{r+3}], v12, {SWS}, s57 offen offset:{2048*ks+1024*h}{ald}")
    sa_loads()
    A("v_lshrrev_b32 v14, 2, v2")
    A("v_lshl_add_u32 v14, v3, 3, v14")
    A("v_lshlrev_b32 v14, 7, v14")
    A("v_and_b32 v13, 3, v2")
    A("v_lshl_add_u32 v14, v13, 3, v14")
    A("s_lshl_b32 s58, s59, 13")
    A("s_add_u32 s58, s58, %d" % WOS)
    A("v_add_u32 v14, s58, v14")
    for t in range(4):
        for ks in range(2):
            for h in range(2):
                r = 128 + 8 * t + 4 * ks + 2 * h
                A(f"ds_read_b64_tr_b16 v[{r}:{r+1}], v14 offset:{4096*ks+512*h+32*t}")
    A("s_lshl_b32 s58, s53, 2")
    A("s_add_u32 s58, s58, s59")
    A("s_lshl_b32 s58, s58, 4")
    A("s_add_u32 s58, s58, s52")
    A("s_lshl_b32 s58, s58, 10")
    A("s_add_u32 s58, s58, %d" % WS_PM)
    A("s_mul_i32 s80, s59, 4608")
    A("v_mul_u32_u24 v20, 272, v3")
    A("v_lshl_add_u32 v20, v2, 4, v20")
    A("v_add_u32 v20, s80, v20")
    A("v_mul_u32_u24 v21, 272, v2")
    A("v_lshl_add_u32 v21, v3, 4, v21")
    A("s_lshl_b32 s80, s59, 6")
    A("v_add_u32 v21, s80, v21")
    tagpieces()
    A("v_mov_b32 v22, 0xfff")
    A("s_mov_b32 s64, 0")
    LBL("L_sa_poll")
    for gi in range(4):
        r = 64 + 4 * gi
        A(f"s_waitcnt vmcnt({3-gi})")
        A(f"v_xor_b32 v17, s44, v{r+1}")
        A(f"v_xor_b32 v18, s45, v{r+3}")
        if gi == 0:
            A("v_or_b32 v16, v17, v18")
        else:
            A("v_or3_b32 v16, v16, v17, v18")
        A(f"v_mov_b32 v{160+2*gi}, v{r}")
        A(f"v_mov_b32 v{161+2*gi}, v{r+2}")
    A("v_cmp_ne_u32 vcc, 0, v16")
    A("s_nop 1")
    A("s_cmp_eq_u64 vcc, 0")
    A("s_cbranch_scc1 L_sa_go")
    A("s_add_u32 s64, s64, 1")
    A("s_cmp_gt_u32 s64, %d" % SPIN_MAX)
    A("s_cbranch_scc1 L_sa_go")
    sa_loads()
    A("s_branch L_sa_poll")
    LBL("L_sa_go")
    stamp(8)
    A("s_waitcnt lgkmcnt(0)")
    for ks in range(2):
        for t in range(4):
            r = 128 + 8 * t + 4 * ks
            c = "0" if ks == 0 else f"v[{32+4*t}:{35+4*t}]"
            A(f"v_mfma_f32_16x16x32_bf16 v[{32+4*t}:{35+4*t}], v[{r}:{r+3}], v[{160+4*ks}:{163+4*ks}], {c}")
    A("s_nop 4")
    for t in range(4):
        if t:
            A("s_nop 0")
        A(f"ds_write_b128 v20, v[{32+4*t}:{35+4*t}] offset:{1088*t}")
    A("s_waitcnt lgkmcnt(0)")
    A("s_barrier")
    for w in range(4):
        A(f"ds_read_b128 v[{32+4*w}:{35+4*w}], v21 offset:{4608*w}")
    A("s_waitcnt lgkmcnt(2)")
    for r in range(4):
        A(f"v_add_f32 v{32+r}, v{32+r}, v{36+r}")
    A("s_waitcnt lgkmcnt(0)")
    for r in range(4):
        A(f"v_add_f32 v{40+r}, v{40+r}, v{44+r}")
    for r in range(4):
        A(f"v_add_f32 v{32+r}, v{32+r}, v{40+r}")
    for r in range(4):
        A(f"v_bfi_b32 v{32+r}, v22, s{80+r}, v{32+r}")
    A(f"buffer_store_dwordx4 v[32:35], v12, {SWS}, s58 offen{bst}")
    stamp(9)
    A("s_branch L_fin")

    LBL("L_final")
    A("s_mul_i32 s57, s52, 9")
    A("s_add_u32 s57, s57, s53")
    A("s_lshr_b32 s58, s57, 2")
    A("s_lshl_b32 s58, s58, 14")
    A("s_and_b32 s59, s57, 3")
    A("s_lshl_b32 s59, s59, 8")
    A("s_add_u32 s72, s58, s59")
    A("s_add_u32 s72, s72, %d" % WS_PM)
    A("s_add_u32 s73, s72, 4096")
    A("s_add_u32 s74, s72, 8192")
    A("s_add_u32 s75, s72, 12288")
    A("v_lshlrev_b32 v14, 10, v3")
    A("v_lshl_add_u32 v14, v2, 4, v14")
    A("s_and_b32 s58, s57, 15")
    A("s_mul_i32 s58, s58, 1152")
    A("s_lshr_b32 s59, s57, 4")
    A("s_lshl_b32 s59, s59, 7")
    A("s_add_u32 s58, s58, s59")
    A("v_lshlrev_b32 v15, 3, v2")
    tagpieces()
    A("s_mov_b32 s64, 0")
    A("s_mov_b32 s79, 0xf")
    A("s_barrier")
    LBL("L_fi_poll")
    for j in range(4):
        r = 64 + 4 * j
        A(f"s_bitcmp0_b32 s79, {j}")
        A(f"s_cbranch_scc1 L_fl{j}")
        A(f"buffer_load_dwordx4 v[{r}:{r+3}], v14, {SWS}, s{72+j} offen{bld}")
        LBL(f"L_fl{j}")
    A("s_waitcnt vmcnt(0)")
    for j in range(4):
        r = 64 + 4 * j
        A(f"s_bitcmp0_b32 s79, {j}")
        A(f"s_cbranch_scc1 L_fc{j}")
        A(f"v_xor_b32 v16, s80, v{r}")
        A(f"v_xor_b32 v17, s81, v{r+1}")
        A(f"v_xor_b32 v18, s82, v{r+2}")
        A(f"v_xor_b32 v19, s83, v{r+3}")
        A("v_or3_b32 v20, v16, v17, v18")
        A("v_or_b32 v20, v20, v19")
        A("v_and_b32 v20, 0xfff, v20")
        A("v_cmp_ne_u32 vcc, 0, v20")
        A("s_nop 1")
        A("s_cmp_lg_u64 vcc, 0")
        A(f"s_cbranch_scc1 L_fc{j}")
        for d in range(4):
            A(f"v_mov_b32 v{r+d}, v{16+d}")
        A(f"s_bitset0_b32 s79, {j}")
        LBL(f"L_fc{j}")
    A("s_cmp_eq_u32 s79, 0")
    A("s_cbranch_scc1 L_fi_go")
    if fsleep:
        A(f"s_sleep {fsleep}")
    A("s_add_u32 s64, s64, 1")
    A("s_cmp_le_u32 s64, %d" % SPIN_MAX)
    A("s_cbranch_scc1 L_fi_poll")
    LBL("L_fi_go")
    stamp(9)
    for d in range(4):
        A(f"v_add_f32 v{64+d}, v{64+d}, v{68+d}")
        A(f"v_add_f32 v{72+d}, v{72+d}, v{76+d}")
    for d in range(4):
        A(f"v_add_f32 v{20+d}, v{64+d}, v{72+d}")
    for d in range(4):
        A(f"v_add_f32 v{24+d}, v{64+d}, v{72+d}")
    for d in range(4):
        A(f"v_permlane32_swap_b32 v{20+d}, v{24+d}")
    A("s_nop 0")
    for d in range(4):
        A(f"v_add_f32 v{28+d}, v{20+d}, v{24+d}")
    for d in range(4):
        A(f"v_add_f32 v{20+d}, v{20+d}, v{24+d}")
    for d in range(4):
        A(f"v_permlane16_swap_b32 v{28+d}, v{20+d}")
    A("s_nop 0")
    for d in range(4):
        A(f"v_add_f32 v{20+d}, v{20+d}, v{28+d}")
    A("v_cvt_pk_bf16_f32 v16, v20, v21")
    A("v_cvt_pk_bf16_f32 v17, v22, v23")
    A("s_mov_b64 exec, 0xffff")
    A(f"buffer_store_dwordx2 v[16:17], v15, {SOUT}, s58 offen")
    A("s_mov_b64 exec, -1")
    A("s_cmp_lg_u32 s2, 0")
    A("s_cbranch_scc1 L_fin")
    A("v_mov_b32 v20, s44")
    A("v_mov_b32 v21, s45")
    A("v_mov_b32 v13, 0")
    A("s_mov_b32 s57, %d" % WS_EP)
    A("s_mov_b64 exec, 1")
    A(f"buffer_store_dwordx2 v[20:21], v13, {SWS}, s57 offen")
    A("s_mov_b64 exec, -1")
    A("s_branch L_fin")

    LBL("L_fallback")
    pf = Path(out)
    A("s_waitcnt lgkmcnt(0)")
    A("s_mov_b32 s46, 0")
    LBL("L_fb_loop")
    qtask_srd()
    q_loads(pf)
    A("s_waitcnt vmcnt(0)")
    q_compute(pf)
    A("s_waitcnt lgkmcnt(0)")
    A("s_barrier")
    A("s_cmp_lg_u32 s3, 0")
    A("s_cbranch_scc1 L_fb_next")
    q_publish(pf, "x")
    A("s_waitcnt vmcnt(0)")
    LBL("L_fb_next")
    A("s_barrier")
    A("s_add_u32 s46, s46, 1")
    A("s_cmp_lt_u32 s46, 16")
    A("s_cbranch_scc1 L_fb_loop")
    A("s_cmp_lg_u32 s3, 1")
    A("s_cbranch_scc1 L_fb_done")
    q_poll_load(pf)
    A("s_waitcnt vmcnt(0)")
    q_finish(pf)
    LBL("L_fb_done")
    A("s_waitcnt lgkmcnt(0)")
    A("s_mov_b32 s78, 1")
    A("s_barrier")
    for jj in range(4):
        A(f"ds_read_b128 v[{16+4*jj}:{19+4*jj}], v14 offset:{64*jj}")
    A("s_branch L_qk")

    LBL("L_fin")
    if stamps:
        A("s_waitcnt vmcnt(0)")
        stamp(3)
        A("s_lshl_b32 s57, s2, 3")
        A("s_add_u32 s57, s57, s3")
        A("s_lshl_b32 s57, s57, 4")
        A("s_add_u32 s84, s18, 0x%x" % WS_STAMP)
        A("s_addc_u32 s85, s19, 0")
        A("s_mov_b32 s86, 0x400000")
        A("s_mov_b32 s87, 0x20000")
        A("s_waitcnt lgkmcnt(0)")
        A("v_mov_b32 v8, s66")
        A("v_mov_b32 v9, s67")
        A("v_mov_b32 v10, s100")
        A("v_mov_b32 v11, s101")
        for i in (1, 2, 4, 5, 6, 7, 8, 9):
            A(f"s_sub_u32 s{sreg(i)}, s{sreg(i)}, s66")
        A("s_getreg_b32 s58, hwreg(HW_REG_XCC_ID)")
        A("v_mov_b32 v16, s58")
        A("v_mov_b32 v17, s68")
        A("v_mov_b32 v18, s70")
        A("v_mov_b32 v19, s64")
        for k, i in enumerate((4, 5, 6, 7)):
            A(f"v_mov_b32 v{20+k}, s{sreg(i)}")
        for k, i in enumerate((8, 9)):
            A(f"v_mov_b32 v{24+k}, s{sreg(i)}")
        A("v_mov_b32 v26, 0")
        A("v_mov_b32 v27, 0")
        A("v_mov_b32 v12, s57")
        A("s_mov_b32 s58, 0x100000")
        A("s_mov_b32 s59, 0x200000")
        A("s_mov_b32 s57, 0x300000")
        A("s_mov_b64 exec, 1")
        A("buffer_store_dwordx4 v[8:11], v12, s[84:87], 0 offen")
        A("buffer_store_dwordx4 v[16:19], v12, s[84:87], s58 offen")
        A("buffer_store_dwordx4 v[20:23], v12, s[84:87], s59 offen")
        A("buffer_store_dwordx4 v[24:27], v12, s[84:87], s57 offen")
    LBL("L_end")
    A("s_endpgm")
    out.append('.section .rodata,"a"')
    out.append(".p2align 6")
    out.append(f".amdhsa_kernel {KNAME}")
    out.append("  .amdhsa_next_free_vgpr 256")
    out.append("  .amdhsa_next_free_sgpr 102")
    out.append("  .amdhsa_accum_offset 256")
    out.append("  .amdhsa_group_segment_fixed_size 0")
    out.append("  .amdhsa_kernarg_size 64")
    out.append("  .amdhsa_user_sgpr_count 2")
    out.append("  .amdhsa_user_sgpr_kernarg_segment_ptr 1")
    out.append("  .amdhsa_system_sgpr_workgroup_id_x 1")
    out.append("  .amdhsa_float_denorm_mode_32 3")
    out.append(".end_amdhsa_kernel")
    return "\n".join(out) + "\n"


if __name__ == "__main__":
    import json
    base = ("nowo", "nowq", "notail")
    V = {
        "k19": dict(wk0=6, wk1=6, wv=6, fsleep=0),
        "k19a": dict(wk0=6, wk1=6, wv=6, fsleep=0, w0add=0, w1add=0),
        "k19b": dict(wk0=6, wk1=6, wv=6, fsleep=0, w0add=0, w1add=0, yprio=1),
        "k19c": dict(wk0=5, wk1=5, wv=5, fsleep=0, w0add=0, w1add=0, yprio=1),
        "k19d": dict(wk0=8, wk1=8, wv=8, fsleep=0, w0add=0, w1add=0, yprio=1),
    }
    for n, c in V.items():
        open(f"bench/{n}_st.s", "w").write(gen(stamps=True, **c))
    open("k19.s", "w").write(gen(**V["k19"]))
    print(" ".join(f"bench/{n}_st.s" for n in V))
    print(json.dumps([f"bench/{n}_st.s" for n in V]))
```

```python
import sys

KNAME = "standalone__sliding_block_cached__sampling_kernel"

KR = 0
WOS = 98304
WQS = 131072
QR = 149504
OP = 131072
PB = 139264
QB = 157696
ST = 158208
FL = 158336
XR = 0
LDS_BYTES = 158464

WS_QP = 0
WS_OM = 1 << 20
WS_EP = (1 << 20) + (768 << 10)
WS_PM = 2 << 20
WS_BYTES = 4 << 20
WS_STAMP = 512 << 20

SPIN_MAX = 200000
QSPIN_MAX = 60


class Path:
    def __init__(self, out, q=None):
        self.out = out
        self.q = list(q) if q else []
        self.count = 0

    def a(self, s):
        self.out.append("  " + s)

    def vm(self, s, tag):
        self.a(s)
        self.count += 1
        self.q.append(tag)
        assert len(self.q) <= 63, "too many outstanding vmem ops"

    def wait(self, tag, extra=""):
        idx = max([i for i, t in enumerate(self.q) if t == tag], default=-1)
        if idx < 0:
            if extra:
                self.a(f"s_waitcnt {extra}")
            return
        n = len(self.q) - 1 - idx
        self.a(f"s_waitcnt vmcnt({n}) {extra}".rstrip())
        self.q = self.q[idx + 1:]

    def throttle(self, w):
        if len(self.q) > w:
            self.a(f"s_waitcnt vmcnt({w})")
            self.q = self.q[len(self.q) - w:] if w else []

    def pending(self, tag):
        return tag in self.q


def gen(stamps=False, fast=True, force_fallback=False, wk0=5, wk1=5, wv=5, nslow=8, wkinit=3, qpolls=(10, 13, 16, 19, 22, 26), qpubs=(8, 9, 10, 12),
        w1add=1, w0add=1, fsleep=2, vburst=8, abl=(), qst='', qld=' sc1', xld=' nt', ast='', ald=' sc1',
        bst=' sc1', bld=' sc1', wo_at=12, yprio=0, dbgst=False):
    out = []
    A = lambda s: out.append("  " + s)
    LBL = lambda s: out.append(s + ":")
    out.append(f"; @launch grid=(256,1,1) block=(512,1,1) lds={LDS_BYTES}")
    out.append('.amdgcn_target "amdgcn-amd-amdhsa--gfx950"')
    out.append(".text")
    out.append(f".globl {KNAME}")
    out.append(".p2align 8")
    out.append(f".type {KNAME},@function")
    LBL(KNAME)

    SK, SV, SWQ, SX, SWO, SWS, SOUT = "s[20:23]", "s[24:27]", "s[28:31]", "s[32:35]", "s[36:39]", "s[40:43]", "s[48:51]"

    def sreg(i):
        return (66 + 2 * i if i < 3 else 100) if i < 4 else 88 + 2 * (i - 4)

    def stamp(i):
        if stamps:
            A(f"s_memrealtime s[{sreg(i)}:{sreg(i)+1}]")

    A("s_cmp_ge_u32 s2, 256")
    A("s_cbranch_scc1 L_end")
    A("s_load_dwordx16 s[4:19], s[0:1], 0")
    stamp(0)
    if stamps:
        for i in range(4, 10):
            A(f"s_mov_b64 s[{sreg(i)}:{sreg(i)+1}], 0")
        A("s_mov_b32 s64, 0")
    A("v_and_b32 v1, 63, v0")
    A("v_lshrrev_b32 v2, 6, v0")
    A("s_and_b32 s52, s2, 15")
    A("v_readfirstlane_b32 s3, v2")
    A("s_lshr_b32 s53, s2, 4")
    A("v_and_b32 v2, 15, v1")
    A("v_lshrrev_b32 v3, 4, v1")
    A("v_lshrrev_b32 v52, 1, v1")
    A("v_lshlrev_b32 v52, 13, v52")
    A("v_and_b32 v13, 1, v1")
    A("v_lshl_add_u32 v52, v13, 4, v52")
    A("v_mul_u32_u24 v53, 1152, v2")
    A("v_lshl_add_u32 v53, v3, 4, v53")
    A("s_mov_b32 s46, s53")
    A("s_mov_b32 s31, 0x20000")
    A("s_mov_b32 s34, 18432")
    A("s_mov_b32 s35, 0x20000")
    A("s_mul_i32 s56, s3, 12288")
    A("s_lshl_b32 s76, s3, 18")
    A("s_add_u32 s77, s76, %d" % (8 << 18))
    A("s_add_u32 s72, s76, %d" % (16 << 18))
    A("s_lshl_b32 s78, s3, 6")
    A("s_add_u32 s79, s78, 512")
    A("s_add_u32 s73, s78, 1024")
    A("s_lshl_b32 s75, s3, 10")
    A("s_add_u32 s75, s75, %d" % WQS)
    A("s_add_u32 s74, s75, 16384")
    A("s_add_u32 s57, s56, 8192")
    A("s_cmp_lt_u32 s3, 2")
    A("s_cselect_b32 s72, s72, 0x7ff00000")
    A("s_cselect_b32 s73, s73, 0x7ff00000")
    A("s_cselect_b32 s74, s74, s57")

    def qtask_srd():
        A("s_lshl_b32 s57, s52, 9")
        A("s_lshl_b32 s58, s46, 5")
        A("s_add_u32 s57, s57, s58")
        A("s_sub_u32 s30, %d, s57" % (0 if "nowq" in abl else 4718592))
        if "nowq" in abl:
            A("s_mov_b32 s30, 0")
        A("s_add_u32 s28, s10, s57")
        A("s_addc_u32 s29, s11, 0")

    def q_loads(p):
        p.a("s_mov_b32 m0, s75")
        p.a("s_lshl_b32 s76, s3, 18")
        p.vm(f"buffer_load_dwordx4 v52, {SWQ}, s76 offen nt lds", "wq")
        p.a("s_add_u32 m0, s75, 8192")
        p.a("s_add_u32 s77, s76, %d" % (8 << 18))
        p.vm(f"buffer_load_dwordx4 v52, {SWQ}, s77 offen nt lds", "wq")
        p.a("s_mov_b32 m0, s74")
        p.a("s_lshl_b32 s78, s3, 6")
        p.vm(f"buffer_load_dwordx4 v52, {SWQ}, s72 offen nt lds", "wq")
        p.vm(f"buffer_load_dwordx4 v[32:35], v53, {SX}, s78 offen{xld}", "wq")
        p.vm(f"buffer_load_dwordx4 v[36:39], v53, {SX}, s78 offen offset:512{xld}", "wq")
        p.vm(f"buffer_load_dwordx4 v[40:43], v53, {SX}, s73 offen{xld}", "wq")

    A("s_waitcnt lgkmcnt(0)")
    A("s_mov_b32 s32, s4")
    A("s_mov_b32 s33, s5")
    qtask_srd()
    p0 = Path(out)
    A("s_setprio 3")
    q_loads(p0)
    A("s_setprio 0")
    A("s_add_u32 s76, s18, %d" % WS_EP)
    A("s_addc_u32 s77, s19, 0")
    A("s_load_dwordx2 s[44:45], s[76:77], 0")
    A("v_xor_b32 v13, v2, v3")
    A("v_lshlrev_b32 v13, 4, v13")
    A("v_lshl_or_b32 v4, v3, 8, v13")
    A("v_xor_b32 v5, 64, v4")
    A("v_xor_b32 v6, 0x80, v4")
    A("v_xor_b32 v7, 0xc0, v4")
    A("s_lshl_b32 s57, s2, 20")
    A("s_add_u32 s57, s57, 0xc0000")
    A("s_lshl_b32 s58, s3, 12")
    A("s_add_u32 s57, s57, s58")
    A("s_sub_u32 s22, 0x40000, s58")
    A("s_mov_b32 s23, 0x20000")
    A("s_add_u32 s20, s6, s57")
    A("s_addc_u32 s21, s7, 0")
    A("s_mov_b32 s54, 0")

    def issue_k1(p, n, force_m0=False):
        bi, i = n // 4, n % 4
        if i == 0 and bi >= 2:
            p.a("s_waitcnt lgkmcnt(0)")
        if i == 0 or force_m0:
            p.a(f"s_add_u32 m0, s56, {(bi % 3) * 4096}")
            p.a("s_nop 0")
        p.vm(f"buffer_load_dwordx4 v{4+i}, {SK}, s54 offen offset:{i*1024} nt lds", f"k{bi}")
        if i == 3:
            p.a("s_add_u32 s54, s54, 0x8000")

    assert wk0 <= 8
    for n in range(wkinit):
        issue_k1(p0, n)
    A("v_lshl_or_b32 v8, v2, 8, v13")
    A("v_add_u32 v8, s56, v8")
    A("v_xor_b32 v9, 64, v8")
    A("v_xor_b32 v10, 0x80, v8")
    A("v_xor_b32 v11, 0xc0, v8")
    A("v_lshlrev_b32 v12, 4, v1")
    A("v_mov_b32 v13, %d" % FL)
    A("v_mov_b32 v16, 0")
    A("v_mov_b32 v17, 0")
    A("v_mov_b32 v18, 0")
    A("v_mov_b32 v19, 0")
    A("s_mov_b64 exec, 1")
    A("ds_write_b128 v13, v[16:19]")
    A("s_mov_b64 exec, -1")
    A("s_mov_b32 s26, s22")
    A("s_mov_b32 s27, 0x20000")
    A("s_add_u32 s24, s8, s57")
    A("s_addc_u32 s25, s9, 0")
    A("s_mov_b32 s55, 0")
    A("s_mov_b32 s60, 0x05040100")
    A("s_mov_b32 s61, 0x07060302")
    A("s_mov_b32 s62, 0x3db504f3")
    A("s_mov_b32 s63, 0x3fb8aa3b")
    A("s_getreg_b32 s47, hwreg(HW_REG_XCC_ID)")
    A("s_and_b32 s47, s47, 15")
    A("s_lshl_b32 s58, s52, 8")
    A("s_lshl_b32 s59, s3, 5")
    A("s_add_u32 s58, s58, s59")
    A("s_mul_i32 s58, s58, 1152")
    A("s_lshl_b32 s59, s53, 7")
    A("s_add_u32 s58, s58, s59")
    A("s_cmp_lt_u32 s53, 9")
    A("s_cselect_b32 s38, %d, 0" % (0 if "nowo" in abl else 35840))
    A("s_cselect_b32 s58, s58, 0")
    A("s_mov_b32 s39, 0x20000")
    A("s_add_u32 s36, s12, s58")
    A("s_addc_u32 s37, s13, 0")
    A("v_lshrrev_b32 v14, 3, v1")
    A("v_mul_u32_u24 v14, 1152, v14")
    A("v_and_b32 v13, 7, v1")
    A("v_lshl_add_u32 v14, v13, 4, v14")
    A("s_lshl_b32 s65, s3, 12")
    A("s_add_u32 s65, s65, %d" % WOS)

    def issue_wo1(p, e):
        p.a(f"s_add_u32 m0, s65, {1024*e}")
        p.a(f"s_mov_b32 s57, {8*1152*e}")
        p.vm(f"buffer_load_dwordx4 v14, {SWO}, s57 offen nt lds", "wo")

    A("s_mov_b32 s40, s18")
    A("s_mov_b32 s41, s19")
    A("s_mov_b32 s42, %d" % WS_BYTES)
    A("s_mov_b32 s43, 0x20000")
    A("s_mov_b32 s48, s14")
    A("s_mov_b32 s49, s15")
    A("s_mov_b32 s50, 18432")
    A("s_mov_b32 s51, 0x20000")
    A("v_lshrrev_b32 v54, 2, v2")
    A("v_lshl_add_u32 v54, v3, 3, v54")
    A("v_lshlrev_b32 v54, 5, v54")
    A("v_and_b32 v13, 3, v2")
    A("v_lshl_add_u32 v54, v13, 3, v54")
    A("s_lshl_b32 s59, s3, 10")
    A("s_add_u32 s59, s59, %d" % QR)
    A("v_add_u32 v55, s59, v12")

    def q_compute(p, count=False):
        p.a("v_add_u32 v13, s75, v54")
        p.a("v_add_u32 v15, s74, v54")
        p.a("ds_read_b64_tr_b16 v[96:97], v13")
        p.a("ds_read_b64_tr_b16 v[98:99], v13 offset:128")
        p.a("ds_read_b64_tr_b16 v[100:101], v13 offset:8192")
        p.a("ds_read_b64_tr_b16 v[102:103], v13 offset:8320")
        p.a("ds_read_b64_tr_b16 v[104:105], v15")
        p.a("ds_read_b64_tr_b16 v[106:107], v15 offset:128")
        p.a("s_waitcnt lgkmcnt(4)")
        p.a("v_mfma_f32_16x16x32_bf16 v[48:51], v[96:99], v[32:35], 0")
        p.a("s_waitcnt lgkmcnt(2)")
        p.a("v_mfma_f32_16x16x32_bf16 v[48:51], v[100:103], v[36:39], v[48:51]")
        p.a("s_waitcnt lgkmcnt(0)")
        p.a("v_mfma_f32_16x16x32_bf16 v[48:51], v[104:107], v[40:43], v[48:51]")
        p.a("v_mov_b32 v13, %d" % FL)
        p.a("v_mov_b32 v16, 1")
        p.a("s_nop 6")
        p.a("ds_write_b128 v55, v[48:51]")
        if count:
            p.a("s_mov_b64 exec, 1")
            p.a("ds_add_u32 v13, v16 offset:12")
            p.a("s_mov_b64 exec, -1")

    A("s_waitcnt lgkmcnt(0)")
    A("s_add_u32 s44, s44, 1")
    A("s_addc_u32 s45, s45, 0")
    A("s_barrier")
    if yprio:
        A("s_cmp_lt_u32 s3, 4")
        A("s_cbranch_scc1 L_noprio")
        A(f"s_setprio {yprio}")
        LBL("L_noprio")
    if "nopub" not in abl:
        A("s_cmp_eq_u32 s3, 0")
        A("s_cbranch_scc1 L_w0")
    if "nopoll" not in abl:
        A("s_cmp_eq_u32 s3, 1")
        A("s_cbranch_scc1 L_w1")
    if "nocode" not in abl:
        A("s_lshl_b32 s57, s53, 3")
        A("s_add_u32 s57, s57, s3")
        A("s_cmp_eq_u32 s57, 2")
        A("s_cbranch_scc1 L_w2")
    q0 = list(p0.q)

    def read_k(p, bi):
        for jj in range(4):
            r = 128 + 16 * bi + 4 * jj
            p.a(f"ds_read_b128 v[{r}:{r+3}], v{8+jj} offset:{(bi % 3) * 4096}")

    def vreg(hb):
        return 64 + 16 * hb

    def issue_v1(p, n):
        hb, i = n // 4, n % 4
        r = vreg(hb) + 4 * i
        p.vm(f"buffer_load_dwordx4 v[{r}:{r+3}], v12, {SV}, s55 offen offset:{i*1024} nt", f"v{hb}")
        if i == 3:
            p.a("s_add_u32 s55, s55, 0x8000")

    def q_publish(p, tag):
        p.a("v_add_u32 v13, %d, v12" % QR)
        for w in range(8):
            p.a(f"ds_read_b128 v[{96+4*w}:{99+4*w}], v13 offset:{1024*w}")
        p.a("s_lshl_b32 s57, s52, 14")
        p.a("s_lshl_b32 s58, s46, 6")
        p.a("s_add_u32 s57, s57, s58")
        p.a("v_lshlrev_b32 v13, 10, v2")
        p.a("v_lshl_add_u32 v13, v3, 4, v13")
        p.a("s_add_u32 s58, s45, s47")
        p.a("v_mov_b32 v17, s44")
        p.a("v_mov_b32 v19, s58")
        p.a("s_waitcnt lgkmcnt(6)")
        for r in range(4):
            p.a(f"v_add_f32 v{96+r}, v{96+r}, v{100+r}")
        p.a("s_waitcnt lgkmcnt(4)")
        for r in range(4):
            p.a(f"v_add_f32 v{104+r}, v{104+r}, v{108+r}")
        p.a("s_waitcnt lgkmcnt(2)")
        for r in range(4):
            p.a(f"v_add_f32 v{112+r}, v{112+r}, v{116+r}")
        for r in range(4):
            p.a(f"v_add_f32 v{96+r}, v{96+r}, v{104+r}")
        p.a("s_waitcnt lgkmcnt(0)")
        for r in range(4):
            p.a(f"v_add_f32 v{120+r}, v{120+r}, v{124+r}")
        for r in range(4):
            p.a(f"v_add_f32 v{112+r}, v{112+r}, v{120+r}")
        for r in range(4):
            p.a(f"v_add_f32 v{96+r}, v{96+r}, v{112+r}")
        p.a("v_cvt_pk_bf16_f32 v16, v96, v97")
        p.a("v_cvt_pk_bf16_f32 v18, v98, v99")
        if tag:
            p.vm(f"buffer_store_dwordx4 v[16:19], v13, {SWS}, s57 offen{qst}", tag)
        else:
            p.a(f"buffer_store_dwordx4 v[16:19], v13, {SWS}, s57 offen{qst}")

    NVPRE = 8

    def kphase(p, wadd=0, polls=(), poll_issue=None, poll_check=None, pubs=(), pub_try=None):
        st = {"read": 0, "poll": 0, "m0": True, "qc": False}

        def service(nissued):
            if not st["qc"] and not p.pending("wq"):
                stamp(4)
                q_compute(p, True)
                st["qc"] = True
            while st["read"] < 8 and 4 * st["read"] + 4 <= nissued and not p.pending(f"k{st['read']}"):
                read_k(p, st["read"])
                st["read"] += 1
        for n in range(wkinit, 32):
            w = (wk0 if n < nslow else wk1) + wadd
            nk = sum(1 for t in p.q if t != "wq")
            if nk >= w:
                p.throttle(w - 1)
            if st["poll"] and n >= st["poll"] + 2:
                k = p.count - st["mark"]
                poll_check(p, st["poll"], k)
                st["poll"] = 0
            if n == 8 and not st["qc"]:
                p.wait("wq")
            service(n)
            if n in pubs and st["qc"]:
                pub_try(p, n)
            if n in polls and not st["poll"]:
                poll_issue(p, n)
                st["poll"] = n
                st["mark"] = p.count
            if n % 4 == 0 and n // 4 >= 3 and st["read"] <= n // 4 - 3:
                p.wait(f"k{n // 4 - 3}")
                service(n)
            assert n % 4 or n // 4 < 3 or st["read"] > n // 4 - 3
            issue_k1(p, n, force_m0=not st["m0"])
            st["m0"] = True
            if n + 1 == wo_at:
                for e in range(4):
                    p.throttle(w - 1)
                    service(n + 1)
                    issue_wo1(p, e)
                st["m0"] = False
        for n in range(NVPRE):
            p.throttle(wk1 + wadd - 1)
            service(32)
            issue_v1(p, n)
        p.wait("k7")
        service(32)
        assert st["read"] == 8 and st["poll"] == 0
        p.throttle(wk1 - 1)

    LBL("L_gen")
    p = Path(out, q0)
    kphase(p)
    endq = list(p.q)
    p.a("s_branch L_join")

    LBL("L_w2")
    p = Path(out, q0)
    p.a("s_getpc_b64 s[58:59]")
    LBL("L_pc")
    p.a("s_sub_u32 s58, s58, L_pc-%s" % KNAME)
    p.a("s_subb_u32 s59, s59, 0")
    p.a("v_lshlrev_b32 v13, 7, v1")
    p.vm("global_load_dword v16, v13, s[58:59]", "code")
    p.a("v_add_u32 v13, 0x2000, v13")
    p.a("v_min_u32 v13, L_end-%s, v13" % KNAME)
    p.vm("global_load_dword v17, v13, s[58:59]", "code")
    kphase(p)
    assert p.q == endq, (p.q, endq)
    p.a("s_branch L_join")

    LBL("L_w0")
    p = Path(out, q0)
    p.a("s_mov_b32 s79, 0")

    def pub_try(p, n, last=False):
        p.a("s_cmp_lg_u32 s79, 0")
        p.a(f"s_cbranch_scc1 L_pu{n}")
        p.a("v_mov_b32 v13, %d" % FL)
        LBL(f"L_pw{n}")
        p.a("ds_read_b32 v16, v13 offset:12")
        p.a("s_waitcnt lgkmcnt(0)")
        p.a("v_readfirstlane_b32 s57, v16")
        p.a("s_cmp_lt_u32 s57, 8")
        p.a(f"s_cbranch_scc1 {'L_pw%d' % n if last else 'L_pu%d' % n}")
        p.a("s_setprio 3")
        q_publish(p, None)
        p.a("s_setprio 0")
        p.a("s_mov_b32 s79, 1")
        stamp(5)
        LBL(f"L_pu{n}")

    lastpub = max(qpubs)
    kphase(p, wadd=w0add, pubs=qpubs, pub_try=lambda pp, n: pub_try(pp, n, n == lastpub))
    assert p.q == endq, (p.q, endq)
    p.a("s_branch L_join")

    LBL("L_w1")
    p = Path(out, q0)

    def q_poll_load(p):
        p.a("s_lshl_b32 s57, s52, 14")
        p.a("s_lshl_b32 s58, s53, 10")
        p.a("s_add_u32 s57, s57, s58")
        p.a(f"buffer_load_dwordx4 v[16:19], v12, {SWS}, s57 offen{qld}")

    def q_check(p):
        p.a("v_subrev_u32 v21, s45, v19")
        p.a("v_xor_b32 v20, s44, v17")
        p.a("v_lshrrev_b32 v22, 4, v21")
        p.a("v_or_b32 v20, v20, v22")
        p.a("v_cmp_ne_u32 vcc, 0, v20")
        p.a("s_nop 1")

    def q_finish(p):
        p.a("v_mov_b32 v17, v18")
        p.a("v_lshlrev_b32 v13, 3, v1")
        p.a("v_add_u32 v13, %d, v13" % QB)
        p.a("ds_write_b64 v13, v[16:17]")

    def q_success(p):
        q_finish(p)
        p.a("v_cmp_ne_u32 vcc, s47, v21")
        p.a("s_nop 1")
        p.a("s_cmp_lg_u64 vcc, 0")
        p.a("s_cselect_b32 s57, 1, 0")
        p.a("v_mov_b32 v56, s57")
        p.a("s_mov_b32 s79, 1")

    def q_flag(p):
        p.a("v_mov_b32 v57, s79")
        p.a("v_mov_b32 v13, %d" % FL)
        p.a("s_waitcnt lgkmcnt(0)")
        p.a("s_mov_b64 exec, 1")
        p.a("ds_write_b64 v13, v[56:57]")
        p.a("s_mov_b64 exec, -1")

    def poll_issue(p, n):
        p.a("s_cmp_lg_u32 s79, 0")
        p.a(f"s_cbranch_scc1 L_pi{n}")
        q_poll_load(p)
        LBL(f"L_pi{n}")

    def poll_check(p, n, k):
        p.a("s_cmp_lg_u32 s79, 0")
        p.a(f"s_cbranch_scc1 L_pc{n}")
        p.a(f"s_waitcnt vmcnt({k})")
        q_check(p)
        if force_fallback:
            p.a(f"s_branch L_pc{n}")
        p.a("s_cmp_lg_u64 vcc, 0")
        p.a(f"s_cbranch_scc1 L_pc{n}")
        q_success(p)
        q_flag(p)
        stamp(6)
        LBL(f"L_pc{n}")

    p.a("s_mov_b32 s79, 0")
    kphase(p, wadd=w1add, polls=qpolls, poll_issue=poll_issue, poll_check=poll_check)
    assert p.q == endq, (p.q, endq)
    if "nopub" in abl:
        p.a("s_branch L_join")
    p.a("s_cmp_lg_u32 s79, 0")
    p.a("s_cbranch_scc1 L_join")
    p.a("s_mov_b32 s64, 0")
    LBL("L_qretry")
    q_poll_load(p)
    p.a("s_waitcnt vmcnt(0)")
    q_check(p)
    if not force_fallback:
        p.a("s_cmp_eq_u64 vcc, 0")
        p.a("s_cbranch_scc1 L_qok")
    p.a("s_add_u32 s64, s64, 1")
    p.a("s_cmp_le_u32 s64, %d" % (QSPIN_MAX if not force_fallback else 1))
    p.a("s_cbranch_scc1 L_qretry")
    p.a("s_mov_b32 s79, 2")
    p.a("v_mov_b32 v56, 1")
    p.a("s_branch L_qflag")
    LBL("L_qok")
    q_success(p)
    LBL("L_qflag")
    q_flag(p)

    LBL("L_join")
    p = Path(out, endq)
    p.a("v_mov_b32 v58, %d" % FL)
    p.a("v_and_b32 v13, 1, v1")
    p.a("v_lshlrev_b32 v13, 8, v13")
    p.a("v_lshl_add_u32 v13, v3, 4, v13")
    p.a("v_add_u32 v14, %d, v13" % QB)
    p.a("s_lshl_b32 s57, s3, 9")
    p.a("s_add_u32 s57, s57, %d" % PB)
    p.a("v_add_u32 v59, s57, v13")
    LBL("L_qwait")
    p.a("ds_read_b64 v[56:57], v58")
    for jj in range(4):
        p.a(f"ds_read_b128 v[{16+4*jj}:{19+4*jj}], v14 offset:{64*jj}")
    p.a("s_waitcnt lgkmcnt(4)")
    p.a("v_readfirstlane_b32 s78, v56")
    p.a("v_readfirstlane_b32 s79, v57")
    if not ({"noq", "nopub", "nopoll"} & set(abl)):
        p.a("s_cmp_eq_u32 s79, 0")
        p.a("s_cbranch_scc1 L_qwait")
        p.a("s_cmp_eq_u32 s79, 2")
        p.a("s_cbranch_scc1 L_fallback")
    LBL("L_qk")
    stamp(1)
    for n in range(8, 8 + vburst):
        issue_v1(p, n)
    p.a("v_mov_b32 v15, v59")
    p.a("s_lshl_b32 s57, s3, 9")
    p.a("s_add_u32 s57, s57, %d" % PB)
    p.a("v_and_b32 v13, 1, v3")
    p.a("v_lshlrev_b32 v13, 8, v13")
    p.a("v_and_b32 v14, 3, v2")
    p.a("v_lshl_add_u32 v13, v14, 4, v13")
    p.a("v_lshrrev_b32 v14, 2, v2")
    p.a("v_lshl_add_u32 v13, v14, 1, v13")
    p.a("v_add_u32 v13, s57, v13")
    p.a("v_and_b32 v14, 1, v3")
    p.a("v_cmp_eq_u32 s[76:77], 1, v14")
    p.a("s_waitcnt lgkmcnt(0)")
    for bi in range(8):
        for jj in range(4):
            c = "0" if jj == 0 else f"v[{32+4*bi}:{35+4*bi}]"
            r = 128 + 16 * bi + 4 * jj
            p.a(f"v_mfma_f32_16x16x32_bf16 v[{32+4*bi}:{35+4*bi}], v[{16+4*jj}:{19+4*jj}], v[{r}:{r+3}], {c}")
    for n in range(8 + vburst, 16):
        issue_v1(p, n)
    p.a("s_nop 7")
    for bi in range(8):
        d = 32 + 4 * bi
        p.a(f"v_cvt_pk_bf16_f32 v{d+2}, v{d}, v{d+1}")
    for bi in range(8):
        d = 32 + 4 * bi
        p.a(f"v_lshlrev_b32 v{d}, 16, v{d+2}")
        p.a(f"v_and_b32 v{d+1}, 0xffff0000, v{d+2}")
    for bi in range(8):
        d = 32 + 4 * bi
        p.a(f"v_mul_f32 v{d}, s62, v{d}")
        p.a(f"v_mul_f32 v{d+1}, s62, v{d+1}")
    for bi in range(8):
        d = 32 + 4 * bi
        p.a(f"v_cvt_pk_bf16_f32 v{d+2}, v{d}, v{d+1}")
    for bi in range(8):
        d = 32 + 4 * bi
        p.a(f"v_lshlrev_b32 v{d}, 16, v{d+2}")
        p.a(f"v_and_b32 v{d+1}, 0xffff0000, v{d+2}")
    for h, m in ((0, 16), (1, 18)):
        p.a(f"v_max3_f32 v{m}, v{32+h}, v{36+h}, v{40+h}")
        p.a(f"v_max3_f32 v{m+1}, v{44+h}, v{48+h}, v{52+h}")
    for h, m in ((0, 16), (1, 18)):
        p.a(f"v_max3_f32 v{m}, v{m}, v{56+h}, v{60+h}")
    for h, m in ((0, 16), (1, 18)):
        p.a(f"v_max_f32 v{m}, v{m}, v{m+1}")
    for sh in (8, 4, 2, 1):
        p.a("s_nop 0")
        for m in (16, 18):
            p.a(f"v_max_f32_dpp v{m}, v{m}, v{m} row_ror:{sh} row_mask:0xf bank_mask:0xf")
    for bi in range(8):
        d = 32 + 4 * bi
        p.a(f"v_sub_f32 v{d}, v{d}, v16")
        p.a(f"v_sub_f32 v{d+1}, v{d+1}, v18")
    for bi in range(8):
        d = 32 + 4 * bi
        p.a(f"v_mul_f32 v{d}, s63, v{d}")
        p.a(f"v_mul_f32 v{d+1}, s63, v{d+1}")
    for bi in range(8):
        d = 32 + 4 * bi
        p.a(f"v_exp_f32 v{d}, v{d}")
        p.a(f"v_exp_f32 v{d+1}, v{d+1}")
    for bi in range(8):
        d = 32 + 4 * bi
        p.a(f"v_cndmask_b32 v{d+2}, v{d}, v{d+1}, s[76:77]")
    for bi in range(8):
        d = 32 + 4 * bi
        p.a(f"v_cvt_pk_bf16_f32 v{d+2}, v{d+2}, v{d+2}")
    for bi in range(8):
        d = 32 + 4 * bi
        p.a(f"ds_write_b16 v13, v{d+2} offset:{(bi >> 1)*64 + (bi & 1)*8}")
    for h, l in ((0, 17), (1, 19)):
        p.a(f"v_add_f32 v{l}, v{32+h}, v{36+h}")
        p.a(f"v_add_f32 v{20+h}, v{40+h}, v{44+h}")
        p.a(f"v_add_f32 v{22+h}, v{48+h}, v{52+h}")
        p.a(f"v_add_f32 v{24+h}, v{56+h}, v{60+h}")
    for h, l in ((0, 17), (1, 19)):
        p.a(f"v_add_f32 v{l}, v{l}, v{20+h}")
        p.a(f"v_add_f32 v{22+h}, v{22+h}, v{24+h}")
    for h, l in ((0, 17), (1, 19)):
        p.a(f"v_add_f32 v{l}, v{l}, v{22+h}")
    for sh in (8, 4, 2, 1):
        p.a("s_nop 0")
        for l in (17, 19):
            p.a(f"v_add_f32_dpp v{l}, v{l}, v{l} row_ror:{sh} row_mask:0xf bank_mask:0xf")
    p.a("s_lshl_b32 s57, s3, 4")
    p.a("s_add_u32 s57, s57, %d" % ST)
    p.a("v_mov_b32 v14, s57")
    p.a("v_mov_b32 v240, v16")
    p.a("v_mov_b32 v241, v18")
    p.a("v_mov_b32 v246, %d" % FL)
    p.a("v_mov_b32 v247, 1")
    p.a("s_mov_b64 exec, 1")
    p.a("ds_write_b128 v14, v[16:19]")
    p.a("ds_add_u32 v246, v247 offset:8")
    p.a("s_mov_b64 exec, -1")
    p.a("s_waitcnt lgkmcnt(0)")
    for mm in range(4):
        p.a(f"ds_read_b128 v[{16+4*mm}:{19+4*mm}], v15 offset:{64*mm}")

    def pv(p, mm):
        def src(i, dw):
            return vreg(2 * mm + (i >> 2)) + 4 * (i & 3) + dw
        tbuf = [192, 196, 200, 204]

        def perms(j):
            tb = tbuf[j % 4]
            for d in range(4):
                p.a(f"v_perm_b32 v{tb+d}, v{src(2*d+1, j >> 1)}, v{src(2*d, j >> 1)}, {'s61' if j & 1 else 's60'}")

        def mf(j):
            tb = tbuf[j % 4]
            c = "0" if mm == 0 else f"v[{32+4*j}:{35+4*j}]"
            p.a(f"v_mfma_f32_16x16x32_bf16 v[{32+4*j}:{35+4*j}], v[{16+4*mm}:{19+4*mm}], v[{tb}:{tb+3}], {c}")
        perms(0)
        for j in range(8):
            if j + 1 < 8:
                perms(j + 1)
            else:
                p.a("s_nop 1")
            mf(j)

    done = 0
    first = True
    for n in range(16, 32):
        p.throttle(wv - 1)
        while done < 3 and not p.pending(f"v{2*done}") and not p.pending(f"v{2*done+1}") and 8 * done + 8 <= n:
            if first:
                p.a("s_waitcnt lgkmcnt(0)")
                first = False
            pv(p, done)
            done += 1
        issue_v1(p, n)
    while done < 3:
        p.wait(f"v{2*done+1}")
        if first:
            p.a("s_waitcnt lgkmcnt(0)")
            first = False
        pv(p, done)
        done += 1
    p.a("v_mov_b32 v14, %d" % ST)
    LBL("L_stwait")
    p.a("ds_read_b32 v247, v246 offset:8")
    for w in range(8):
        p.a(f"ds_read_b128 v[{208+4*w}:{211+4*w}], v14 offset:{16*w}")
    p.a("s_waitcnt lgkmcnt(8)")
    p.a("v_readfirstlane_b32 s57, v247")
    p.a("s_cmp_lt_u32 s57, 8")
    p.a("s_cbranch_scc1 L_stwait")
    p.a("s_waitcnt lgkmcnt(0)")
    for h in range(2):
        M = 244 + h
        p.a(f"v_max3_f32 v{M}, v{208+2*h}, v{212+2*h}, v{216+2*h}")
        p.a(f"v_max3_f32 v{M}, v{M}, v{220+2*h}, v{224+2*h}")
        p.a(f"v_max3_f32 v{M}, v{M}, v{228+2*h}, v{232+2*h}")
        p.a(f"v_max_f32 v{M}, v{M}, v{236+2*h}")
    for h in range(2):
        M = 244 + h
        for w in range(8):
            p.a(f"v_sub_f32 v{208+4*w+2*h}, v{208+4*w+2*h}, v{M}")
        p.a(f"v_sub_f32 v{240+h}, v{240+h}, v{M}")
    for h in range(2):
        for w in range(8):
            p.a(f"v_mul_f32 v{208+4*w+2*h}, s63, v{208+4*w+2*h}")
        p.a(f"v_mul_f32 v{240+h}, s63, v{240+h}")
    for h in range(2):
        for w in range(8):
            p.a(f"v_exp_f32 v{208+4*w+2*h}, v{208+4*w+2*h}")
        p.a(f"v_exp_f32 v{240+h}, v{240+h}")
    for h in range(2):
        p.a(f"v_mul_f32 v{242+h}, v{208+2*h}, v{209+2*h}")
    for w in range(1, 8):
        for h in range(2):
            p.a(f"v_fmac_f32 v{242+h}, v{208+4*w+2*h}, v{209+4*w+2*h}")
    for h in range(2):
        p.a(f"v_rcp_f32 v{242+h}, v{242+h}")
    p.a("s_nop 0")
    for h in range(2):
        p.a(f"v_mul_f32 v{242+h}, v{242+h}, v{240+h}")
    p.a("s_lshl_b32 s57, s3, 10")
    p.a("s_add_u32 s57, s57, %d" % OP)
    p.a("v_lshlrev_b32 v14, 5, v2")
    p.a("v_add_u32 v14, s57, v14")
    p.wait("v7")
    stamp(2)
    pv(p, 3)
    p.a("s_nop 4")
    for j in range(8):
        if j == 6:
            p.a("s_nop 3")
        for h in range(2):
            p.a(f"v_mul_f32 v{64+8*h+j}, v{242+h}, v{32+4*j+h}")
    p.a("s_mov_b64 exec, 0xffff")
    for h in range(2):
        for half in range(2):
            p.a(f"ds_write_b128 v14, v[{64+8*h+4*half}:{67+8*h+4*half}] offset:{512*h+16*half}")
    p.a("s_mov_b64 exec, -1")
    p.a("s_waitcnt lgkmcnt(0)")
    p.a("s_barrier")
    stamp(7)
    if "notail" in abl:
        p.a("s_branch L_fin")
    p.a("s_cmp_eq_u32 s3, 0")
    p.a("s_cbranch_scc1 L_reduce")
    p.a("s_cmp_ge_u32 s53, 9")
    p.a("s_cbranch_scc1 L_fin")
    p.a("s_cmp_ge_u32 s3, 4")
    p.a("s_cbranch_scc1 L_stageA")
    p.a("s_cmp_eq_u32 s3, 1")
    p.a("s_cbranch_scc1 L_final")
    p.a("s_branch L_fin")

    LBL("L_reduce")
    A("s_setprio 3")
    A("v_add_u32 v14, %d, v12" % OP)
    for w in range(8):
        A(f"ds_read_b128 v[{64+4*w}:{67+4*w}], v14 offset:{1024*w}")
    A("s_lshl_b32 s57, s52, 14")
    A("s_lshl_b32 s58, s53, 4")
    A("s_add_u32 s57, s57, s58")
    A("s_add_u32 s57, s57, %d" % WS_OM)
    A("v_lshrrev_b32 v13, 3, v1")
    A("v_lshlrev_b32 v13, 11, v13")
    A("v_and_b32 v15, 1, v1")
    A("v_lshl_add_u32 v13, v15, 10, v13")
    A("v_bfe_u32 v15, v1, 1, 2")
    A("v_lshl_add_u32 v13, v15, 8, v13")
    A("v_mov_b32 v17, s44")
    A("v_mov_b32 v19, s45")
    A("s_waitcnt lgkmcnt(6)")
    for r in range(4):
        A(f"v_add_f32 v{64+r}, v{64+r}, v{68+r}")
    A("s_waitcnt lgkmcnt(4)")
    for r in range(4):
        A(f"v_add_f32 v{72+r}, v{72+r}, v{76+r}")
    A("s_waitcnt lgkmcnt(2)")
    for r in range(4):
        A(f"v_add_f32 v{80+r}, v{80+r}, v{84+r}")
    for r in range(4):
        A(f"v_add_f32 v{64+r}, v{64+r}, v{72+r}")
    A("s_waitcnt lgkmcnt(0)")
    for r in range(4):
        A(f"v_add_f32 v{88+r}, v{88+r}, v{92+r}")
    for r in range(4):
        A(f"v_add_f32 v{80+r}, v{80+r}, v{88+r}")
    for r in range(4):
        A(f"v_add_f32 v{64+r}, v{64+r}, v{80+r}")
    A("v_cvt_pk_bf16_f32 v16, v64, v65")
    A("v_cvt_pk_bf16_f32 v18, v66, v67")
    stamp(8)
    if fast:
        A("s_cmp_eq_u32 s78, 0")
        A("s_cbranch_scc1 L_red_fast")
    A(f"buffer_store_dwordx4 v[16:19], v13, {SWS}, s57 offen sc1")
    A("s_branch L_fin")
    if fast:
        LBL("L_red_fast")
        A(f"buffer_store_dwordx4 v[16:19], v13, {SWS}, s57 offen{ast}")
        A("s_branch L_fin")

    def tagpieces():
        A("s_and_b32 s80, s44, 0xfff")
        A("s_bfe_u32 s81, s44, 0xc000c")
        A("s_lshr_b32 s82, s44, 24")
        A("s_lshl_b32 s83, s45, 8")
        A("s_or_b32 s82, s82, s83")
        A("s_and_b32 s82, s82, 0xfff")
        A("s_bfe_u32 s83, s45, 0xc0004")

    LBL("L_stageA")
    A("s_sub_u32 s59, s3, 4")
    A("s_lshl_b32 s57, s52, 14")
    A("s_lshl_b32 s58, s59, 12")
    A("s_add_u32 s57, s57, s58")
    A("s_add_u32 s57, s57, %d" % WS_OM)

    def sa_loads():
        for ks in range(2):
            for h in range(2):
                r = 64 + 8 * ks + 4 * h
                A(f"buffer_load_dwordx4 v[{r}:{r+3}], v12, {SWS}, s57 offen offset:{2048*ks+1024*h}{ald}")
    sa_loads()
    A("v_lshrrev_b32 v14, 2, v2")
    A("v_lshl_add_u32 v14, v3, 3, v14")
    A("v_lshlrev_b32 v14, 7, v14")
    A("v_and_b32 v13, 3, v2")
    A("v_lshl_add_u32 v14, v13, 3, v14")
    A("s_lshl_b32 s58, s59, 13")
    A("s_add_u32 s58, s58, %d" % WOS)
    A("v_add_u32 v14, s58, v14")
    for t in range(4):
        for ks in range(2):
            for h in range(2):
                r = 128 + 8 * t + 4 * ks + 2 * h
                A(f"ds_read_b64_tr_b16 v[{r}:{r+1}], v14 offset:{4096*ks+512*h+32*t}")
    A("s_lshl_b32 s58, s53, 2")
    A("s_add_u32 s58, s58, s59")
    A("s_lshl_b32 s58, s58, 4")
    A("s_add_u32 s58, s58, s52")
    A("s_lshl_b32 s58, s58, 10")
    A("s_add_u32 s58, s58, %d" % WS_PM)
    A("s_mul_i32 s80, s59, 4608")
    A("v_mul_u32_u24 v20, 272, v3")
    A("v_lshl_add_u32 v20, v2, 4, v20")
    A("v_add_u32 v20, s80, v20")
    A("v_mul_u32_u24 v21, 272, v2")
    A("v_lshl_add_u32 v21, v3, 4, v21")
    A("s_lshl_b32 s80, s59, 6")
    A("v_add_u32 v21, s80, v21")
    tagpieces()
    A("v_mov_b32 v22, 0xfff")
    A("s_mov_b32 s64, 0")
    LBL("L_sa_poll")
    for gi in range(4):
        r = 64 + 4 * gi
        A(f"s_waitcnt vmcnt({3-gi})")
        A(f"v_xor_b32 v17, s44, v{r+1}")
        A(f"v_xor_b32 v18, s45, v{r+3}")
        if gi == 0:
            A("v_or_b32 v16, v17, v18")
        else:
            A("v_or3_b32 v16, v16, v17, v18")
        A(f"v_mov_b32 v{160+2*gi}, v{r}")
        A(f"v_mov_b32 v{161+2*gi}, v{r+2}")
    A("v_cmp_ne_u32 vcc, 0, v16")
    A("s_nop 1")
    A("s_cmp_eq_u64 vcc, 0")
    A("s_cbranch_scc1 L_sa_go")
    A("s_add_u32 s64, s64, 1")
    A("s_cmp_gt_u32 s64, %d" % SPIN_MAX)
    A("s_cbranch_scc1 L_sa_go")
    sa_loads()
    A("s_branch L_sa_poll")
    LBL("L_sa_go")
    stamp(8)
    A("s_waitcnt lgkmcnt(0)")
    for ks in range(2):
        for t in range(4):
            r = 128 + 8 * t + 4 * ks
            c = "0" if ks == 0 else f"v[{32+4*t}:{35+4*t}]"
            A(f"v_mfma_f32_16x16x32_bf16 v[{32+4*t}:{35+4*t}], v[{r}:{r+3}], v[{160+4*ks}:{163+4*ks}], {c}")
    A("s_nop 4")
    for t in range(4):
        if t:
            A("s_nop 0")
        A(f"ds_write_b128 v20, v[{32+4*t}:{35+4*t}] offset:{1088*t}")
    A("s_waitcnt lgkmcnt(0)")
    A("s_barrier")
    for w in range(4):
        A(f"ds_read_b128 v[{32+4*w}:{35+4*w}], v21 offset:{4608*w}")
    A("s_waitcnt lgkmcnt(2)")
    for r in range(4):
        A(f"v_add_f32 v{32+r}, v{32+r}, v{36+r}")
    A("s_waitcnt lgkmcnt(0)")
    for r in range(4):
        A(f"v_add_f32 v{40+r}, v{40+r}, v{44+r}")
    for r in range(4):
        A(f"v_add_f32 v{32+r}, v{32+r}, v{40+r}")
    for r in range(4):
        A(f"v_bfi_b32 v{32+r}, v22, s{80+r}, v{32+r}")
    A(f"buffer_store_dwordx4 v[32:35], v12, {SWS}, s58 offen{bst}")
    stamp(9)
    A("s_branch L_fin")

    LBL("L_final")
    A("s_mul_i32 s57, s52, 9")
    A("s_add_u32 s57, s57, s53")
    A("s_lshr_b32 s58, s57, 2")
    A("s_lshl_b32 s58, s58, 14")
    A("s_and_b32 s59, s57, 3")
    A("s_lshl_b32 s59, s59, 8")
    A("s_add_u32 s72, s58, s59")
    A("s_add_u32 s72, s72, %d" % WS_PM)
    A("s_add_u32 s73, s72, 4096")
    A("s_add_u32 s74, s72, 8192")
    A("s_add_u32 s75, s72, 12288")
    A("v_lshlrev_b32 v14, 10, v3")
    A("v_lshl_add_u32 v14, v2, 4, v14")
    A("s_and_b32 s58, s57, 15")
    A("s_mul_i32 s58, s58, 1152")
    A("s_lshr_b32 s59, s57, 4")
    A("s_lshl_b32 s59, s59, 7")
    A("s_add_u32 s58, s58, s59")
    A("v_lshlrev_b32 v15, 3, v2")
    tagpieces()
    A("s_mov_b32 s64, 0")
    A("s_mov_b32 s79, 0xf")
    A("s_barrier")
    LBL("L_fi_poll")
    for j in range(4):
        r = 64 + 4 * j
        A(f"s_bitcmp0_b32 s79, {j}")
        A(f"s_cbranch_scc1 L_fl{j}")
        A(f"buffer_load_dwordx4 v[{r}:{r+3}], v14, {SWS}, s{72+j} offen{bld}")
        LBL(f"L_fl{j}")
    A("s_waitcnt vmcnt(0)")
    for j in range(4):
        r = 64 + 4 * j
        A(f"s_bitcmp0_b32 s79, {j}")
        A(f"s_cbranch_scc1 L_fc{j}")
        A(f"v_xor_b32 v16, s80, v{r}")
        A(f"v_xor_b32 v17, s81, v{r+1}")
        A(f"v_xor_b32 v18, s82, v{r+2}")
        A(f"v_xor_b32 v19, s83, v{r+3}")
        A("v_or3_b32 v20, v16, v17, v18")
        A("v_or_b32 v20, v20, v19")
        A("v_and_b32 v20, 0xfff, v20")
        A("v_cmp_ne_u32 vcc, 0, v20")
        A("s_nop 1")
        A("s_cmp_lg_u64 vcc, 0")
        A(f"s_cbranch_scc1 L_fc{j}")
        for d in range(4):
            A(f"v_mov_b32 v{r+d}, v{16+d}")
        A(f"s_bitset0_b32 s79, {j}")
        LBL(f"L_fc{j}")
    A("s_cmp_eq_u32 s79, 0")
    A("s_cbranch_scc1 L_fi_go")
    if fsleep:
        A(f"s_sleep {fsleep}")
    A("s_add_u32 s64, s64, 1")
    A("s_cmp_le_u32 s64, %d" % SPIN_MAX)
    A("s_cbranch_scc1 L_fi_poll")
    LBL("L_fi_go")
    stamp(9)
    for d in range(4):
        A(f"v_add_f32 v{64+d}, v{64+d}, v{68+d}")
        A(f"v_add_f32 v{72+d}, v{72+d}, v{76+d}")
    for d in range(4):
        A(f"v_add_f32 v{20+d}, v{64+d}, v{72+d}")
    for d in range(4):
        A(f"v_add_f32 v{24+d}, v{64+d}, v{72+d}")
    for d in range(4):
        A(f"v_permlane32_swap_b32 v{20+d}, v{24+d}")
    A("s_nop 0")
    for d in range(4):
        A(f"v_add_f32 v{28+d}, v{20+d}, v{24+d}")
    for d in range(4):
        A(f"v_add_f32 v{20+d}, v{20+d}, v{24+d}")
    for d in range(4):
        A(f"v_permlane16_swap_b32 v{28+d}, v{20+d}")
    A("s_nop 0")
    for d in range(4):
        A(f"v_add_f32 v{20+d}, v{20+d}, v{28+d}")
    A("v_cvt_pk_bf16_f32 v16, v20, v21")
    A("v_cvt_pk_bf16_f32 v17, v22, v23")
    A("s_mov_b64 exec, 0xffff")
    A(f"buffer_store_dwordx2 v[16:17], v15, {SOUT}, s58 offen")
    A("s_mov_b64 exec, -1")
    A("s_cmp_lg_u32 s2, 0")
    A("s_cbranch_scc1 L_fin")
    A("v_mov_b32 v20, s44")
    A("v_mov_b32 v21, s45")
    A("v_mov_b32 v13, 0")
    A("s_mov_b32 s57, %d" % WS_EP)
    A("s_mov_b64 exec, 1")
    A(f"buffer_store_dwordx2 v[20:21], v13, {SWS}, s57 offen")
    A("s_mov_b64 exec, -1")
    A("s_branch L_fin")

    LBL("L_fallback")
    pf = Path(out)
    A("s_waitcnt lgkmcnt(0)")
    A("s_mov_b32 s46, 0")
    LBL("L_fb_loop")
    qtask_srd()
    q_loads(pf)
    A("s_waitcnt vmcnt(0)")
    q_compute(pf)
    A("s_waitcnt lgkmcnt(0)")
    A("s_barrier")
    A("s_cmp_lg_u32 s3, 0")
    A("s_cbranch_scc1 L_fb_next")
    q_publish(pf, "x")
    A("s_waitcnt vmcnt(0)")
    LBL("L_fb_next")
    A("s_barrier")
    A("s_add_u32 s46, s46, 1")
    A("s_cmp_lt_u32 s46, 16")
    A("s_cbranch_scc1 L_fb_loop")
    A("s_cmp_lg_u32 s3, 1")
    A("s_cbranch_scc1 L_fb_done")
    q_poll_load(pf)
    A("s_waitcnt vmcnt(0)")
    q_finish(pf)
    LBL("L_fb_done")
    A("s_waitcnt lgkmcnt(0)")
    A("s_mov_b32 s78, 1")
    A("s_barrier")
    for jj in range(4):
        A(f"ds_read_b128 v[{16+4*jj}:{19+4*jj}], v14 offset:{64*jj}")
    A("s_branch L_qk")

    LBL("L_fin")
    if dbgst:
        A("s_waitcnt vmcnt(0)")
        stamp(3)
        A("s_mov_b32 s84, s16")
        A("s_mov_b32 s85, s17")
        A("s_mov_b32 s86, 256")
        A("s_mov_b32 s87, 0x20000")
        A("s_waitcnt lgkmcnt(0)")
        A("s_not_b32 s57, s66")
        A("v_mov_b32 v12, 0")
        A("s_mov_b64 exec, 1")
        for k, r in enumerate(("s57", "s66", "s100", "s68", "s70", f"s{sreg(4)}", f"s{sreg(5)}", f"s{sreg(6)}", f"s{sreg(7)}", f"s{sreg(8)}", f"s{sreg(9)}")):
            A(f"v_mov_b32 v16, {r}")
            A(f"buffer_atomic_umax v16, v12, s[84:87], 0 offen offset:{4*k} sc1")
            A("s_nop 1")
        A("s_branch L_end")
    if stamps:
        A("s_waitcnt vmcnt(0)")
        stamp(3)
        A("s_lshl_b32 s57, s2, 3")
        A("s_add_u32 s57, s57, s3")
        A("s_lshl_b32 s57, s57, 4")
        A("s_add_u32 s84, s18, 0x%x" % WS_STAMP)
        A("s_addc_u32 s85, s19, 0")
        A("s_mov_b32 s86, 0x400000")
        A("s_mov_b32 s87, 0x20000")
        A("s_waitcnt lgkmcnt(0)")
        A("v_mov_b32 v8, s66")
        A("v_mov_b32 v9, s67")
        A("v_mov_b32 v10, s100")
        A("v_mov_b32 v11, s101")
        for i in (1, 2, 4, 5, 6, 7, 8, 9):
            A(f"s_sub_u32 s{sreg(i)}, s{sreg(i)}, s66")
        A("s_getreg_b32 s58, hwreg(HW_REG_XCC_ID)")
        A("v_mov_b32 v16, s58")
        A("v_mov_b32 v17, s68")
        A("v_mov_b32 v18, s70")
        A("v_mov_b32 v19, s64")
        for k, i in enumerate((4, 5, 6, 7)):
            A(f"v_mov_b32 v{20+k}, s{sreg(i)}")
        for k, i in enumerate((8, 9)):
            A(f"v_mov_b32 v{24+k}, s{sreg(i)}")
        A("v_mov_b32 v26, 0")
        A("v_mov_b32 v27, 0")
        A("v_mov_b32 v12, s57")
        A("s_mov_b32 s58, 0x100000")
        A("s_mov_b32 s59, 0x200000")
        A("s_mov_b32 s57, 0x300000")
        A("s_mov_b64 exec, 1")
        A("buffer_store_dwordx4 v[8:11], v12, s[84:87], 0 offen")
        A("buffer_store_dwordx4 v[16:19], v12, s[84:87], s58 offen")
        A("buffer_store_dwordx4 v[20:23], v12, s[84:87], s59 offen")
        A("buffer_store_dwordx4 v[24:27], v12, s[84:87], s57 offen")
    LBL("L_end")
    A("s_endpgm")
    out.append('.section .rodata,"a"')
    out.append(".p2align 6")
    out.append(f".amdhsa_kernel {KNAME}")
    out.append("  .amdhsa_next_free_vgpr 256")
    out.append("  .amdhsa_next_free_sgpr 102")
    out.append("  .amdhsa_accum_offset 256")
    out.append("  .amdhsa_group_segment_fixed_size 0")
    out.append("  .amdhsa_kernarg_size 64")
    out.append("  .amdhsa_user_sgpr_count 2")
    out.append("  .amdhsa_user_sgpr_kernarg_segment_ptr 1")
    out.append("  .amdhsa_system_sgpr_workgroup_id_x 1")
    out.append("  .amdhsa_float_denorm_mode_32 3")
    out.append(".end_amdhsa_kernel")
    return "\n".join(out) + "\n"


if __name__ == "__main__":
    import json
    base = ("nowo", "nowq", "notail")
    V = {
        "k19": dict(wk0=6, wk1=6, wv=6, fsleep=0),
        "k19a": dict(wk0=6, wk1=6, wv=6, fsleep=0, w0add=0, w1add=0),
        "k19b": dict(wk0=6, wk1=6, wv=6, fsleep=0, w0add=0, w1add=0, yprio=1),
        "k19c": dict(wk0=5, wk1=5, wv=5, fsleep=0, w0add=0, w1add=0, yprio=1),
        "k19d": dict(wk0=8, wk1=8, wv=8, fsleep=0, w0add=0, w1add=0, yprio=1),
    }
    for n, c in V.items():
        open(f"bench/{n}_st.s", "w").write(gen(stamps=True, **c))
    open("k19.s", "w").write(gen(**V["k19"]))
    open("k19_dbg.s", "w").write(gen(stamps=True, dbgst=True, **V["k19"]))
    print(" ".join(f"bench/{n}_st.s" for n in V))
    print(json.dumps([f"bench/{n}_st.s" for n in V]))
```

```python
import sys

KNAME = "standalone__sliding_block_cached__sampling_kernel"

KR = 0
WOS = 98304
WQS = 131072
QR = 149504
OP = 131072
PB = 139264
QB = 157696
ST = 158208
FL = 158336
XR = 0
LDS_BYTES = 158464

WS_QP = 0
WS_OM = 1 << 20
WS_EP = (1 << 20) + (768 << 10)
WS_PM = 2 << 20
WS_BYTES = 4 << 20
WS_STAMP = 512 << 20

SPIN_MAX = 200000
QSPIN_MAX = 60


class Path:
    def __init__(self, out, q=None):
        self.out = out
        self.q = list(q) if q else []
        self.count = 0

    def a(self, s):
        self.out.append("  " + s)

    def vm(self, s, tag):
        self.a(s)
        self.count += 1
        self.q.append(tag)
        assert len(self.q) <= 63, "too many outstanding vmem ops"

    def wait(self, tag, extra=""):
        idx = max([i for i, t in enumerate(self.q) if t == tag], default=-1)
        if idx < 0:
            if extra:
                self.a(f"s_waitcnt {extra}")
            return
        n = len(self.q) - 1 - idx
        self.a(f"s_waitcnt vmcnt({n}) {extra}".rstrip())
        self.q = self.q[idx + 1:]

    def throttle(self, w):
        if len(self.q) > w:
            self.a(f"s_waitcnt vmcnt({w})")
            self.q = self.q[len(self.q) - w:] if w else []

    def pending(self, tag):
        return tag in self.q


def gen(stamps=False, fast=True, force_fallback=False, wk0=5, wk1=5, wv=5, nslow=8, wkinit=3, qpolls=(10, 13, 16, 19, 22, 26), qpubs=(8, 9, 10, 12),
        w1add=1, w0add=1, fsleep=2, vburst=8, abl=(), qst='', qld=' sc1', xld=' nt', ast='', ald=' sc1',
        bst=' sc1', bld=' sc1', wo_at=12, yprio=0, dbgst=False):
    out = []
    A = lambda s: out.append("  " + s)
    LBL = lambda s: out.append(s + ":")
    out.append(f"; @launch grid=(256,1,1) block=(512,1,1) lds={LDS_BYTES}")
    out.append('.amdgcn_target "amdgcn-amd-amdhsa--gfx950"')
    out.append(".text")
    out.append(f".globl {KNAME}")
    out.append(".p2align 8")
    out.append(f".type {KNAME},@function")
    LBL(KNAME)

    SK, SV, SWQ, SX, SWO, SWS, SOUT = "s[20:23]", "s[24:27]", "s[28:31]", "s[32:35]", "s[36:39]", "s[40:43]", "s[48:51]"

    def sreg(i):
        return (66 + 2 * i if i < 3 else 100) if i < 4 else 88 + 2 * (i - 4)

    def stamp(i):
        if stamps:
            A(f"s_memrealtime s[{sreg(i)}:{sreg(i)+1}]")

    A("s_cmp_ge_u32 s2, 256")
    A("s_cbranch_scc1 L_end")
    A("s_load_dwordx16 s[4:19], s[0:1], 0")
    stamp(0)
    if stamps:
        for i in range(4, 10):
            A(f"s_mov_b64 s[{sreg(i)}:{sreg(i)+1}], 0")
        A("s_mov_b32 s64, 0")
    A("v_and_b32 v1, 63, v0")
    A("v_lshrrev_b32 v2, 6, v0")
    A("s_and_b32 s52, s2, 15")
    A("v_readfirstlane_b32 s3, v2")
    A("s_lshr_b32 s53, s2, 4")
    A("v_and_b32 v2, 15, v1")
    A("v_lshrrev_b32 v3, 4, v1")
    A("v_lshrrev_b32 v52, 1, v1")
    A("v_lshlrev_b32 v52, 13, v52")
    A("v_and_b32 v13, 1, v1")
    A("v_lshl_add_u32 v52, v13, 4, v52")
    A("v_mul_u32_u24 v53, 1152, v2")
    A("v_lshl_add_u32 v53, v3, 4, v53")
    A("s_mov_b32 s46, s53")
    A("s_mov_b32 s31, 0x20000")
    A("s_mov_b32 s34, 18432")
    A("s_mov_b32 s35, 0x20000")
    A("s_mul_i32 s56, s3, 12288")
    A("s_lshl_b32 s76, s3, 18")
    A("s_add_u32 s77, s76, %d" % (8 << 18))
    A("s_add_u32 s72, s76, %d" % (16 << 18))
    A("s_lshl_b32 s78, s3, 6")
    A("s_add_u32 s79, s78, 512")
    A("s_add_u32 s73, s78, 1024")
    A("s_lshl_b32 s75, s3, 10")
    A("s_add_u32 s75, s75, %d" % WQS)
    A("s_add_u32 s74, s75, 16384")
    A("s_add_u32 s57, s56, 8192")
    A("s_cmp_lt_u32 s3, 2")
    A("s_cselect_b32 s72, s72, 0x7ff00000")
    A("s_cselect_b32 s73, s73, 0x7ff00000")
    A("s_cselect_b32 s74, s74, s57")

    def qtask_srd():
        A("s_lshl_b32 s57, s52, 9")
        A("s_lshl_b32 s58, s46, 5")
        A("s_add_u32 s57, s57, s58")
        A("s_sub_u32 s30, %d, s57" % (0 if "nowq" in abl else 4718592))
        if "nowq" in abl:
            A("s_mov_b32 s30, 0")
        A("s_add_u32 s28, s10, s57")
        A("s_addc_u32 s29, s11, 0")

    def q_loads(p):
        p.a("s_mov_b32 m0, s75")
        p.a("s_lshl_b32 s76, s3, 18")
        p.vm(f"buffer_load_dwordx4 v52, {SWQ}, s76 offen nt lds", "wq")
        p.a("s_add_u32 m0, s75, 8192")
        p.a("s_add_u32 s77, s76, %d" % (8 << 18))
        p.vm(f"buffer_load_dwordx4 v52, {SWQ}, s77 offen nt lds", "wq")
        p.a("s_mov_b32 m0, s74")
        p.a("s_lshl_b32 s78, s3, 6")
        p.vm(f"buffer_load_dwordx4 v52, {SWQ}, s72 offen nt lds", "wq")
        p.vm(f"buffer_load_dwordx4 v[32:35], v53, {SX}, s78 offen{xld}", "wq")
        p.vm(f"buffer_load_dwordx4 v[36:39], v53, {SX}, s78 offen offset:512{xld}", "wq")
        p.vm(f"buffer_load_dwordx4 v[40:43], v53, {SX}, s73 offen{xld}", "wq")

    A("s_waitcnt lgkmcnt(0)")
    A("s_mov_b32 s32, s4")
    A("s_mov_b32 s33, s5")
    qtask_srd()
    p0 = Path(out)
    A("s_setprio 3")
    q_loads(p0)
    A("s_setprio 0")
    A("s_add_u32 s76, s18, %d" % WS_EP)
    A("s_addc_u32 s77, s19, 0")
    A("s_load_dwordx2 s[44:45], s[76:77], 0")
    A("v_xor_b32 v13, v2, v3")
    A("v_lshlrev_b32 v13, 4, v13")
    A("v_lshl_or_b32 v4, v3, 8, v13")
    A("v_xor_b32 v5, 64, v4")
    A("v_xor_b32 v6, 0x80, v4")
    A("v_xor_b32 v7, 0xc0, v4")
    A("s_lshl_b32 s57, s2, 20")
    A("s_add_u32 s57, s57, 0xc0000")
    A("s_lshl_b32 s58, s3, 12")
    A("s_add_u32 s57, s57, s58")
    A("s_sub_u32 s22, 0x40000, s58")
    A("s_mov_b32 s23, 0x20000")
    A("s_add_u32 s20, s6, s57")
    A("s_addc_u32 s21, s7, 0")
    A("s_mov_b32 s54, 0")

    def issue_k1(p, n, force_m0=False):
        bi, i = n // 4, n % 4
        if i == 0 and bi >= 2:
            p.a("s_waitcnt lgkmcnt(0)")
        if i == 0 or force_m0:
            p.a(f"s_add_u32 m0, s56, {(bi % 3) * 4096}")
            p.a("s_nop 0")
        p.vm(f"buffer_load_dwordx4 v{4+i}, {SK}, s54 offen offset:{i*1024} nt lds", f"k{bi}")
        if i == 3:
            p.a("s_add_u32 s54, s54, 0x8000")

    assert wk0 <= 8
    for n in range(wkinit):
        issue_k1(p0, n)
    A("v_lshl_or_b32 v8, v2, 8, v13")
    A("v_add_u32 v8, s56, v8")
    A("v_xor_b32 v9, 64, v8")
    A("v_xor_b32 v10, 0x80, v8")
    A("v_xor_b32 v11, 0xc0, v8")
    A("v_lshlrev_b32 v12, 4, v1")
    A("v_mov_b32 v13, %d" % FL)
    A("v_mov_b32 v16, 0")
    A("v_mov_b32 v17, 0")
    A("v_mov_b32 v18, 0")
    A("v_mov_b32 v19, 0")
    A("s_mov_b64 exec, 1")
    A("ds_write_b128 v13, v[16:19]")
    A("s_mov_b64 exec, -1")
    A("s_mov_b32 s26, s22")
    A("s_mov_b32 s27, 0x20000")
    A("s_add_u32 s24, s8, s57")
    A("s_addc_u32 s25, s9, 0")
    A("s_mov_b32 s55, 0")
    A("s_mov_b32 s60, 0x05040100")
    A("s_mov_b32 s61, 0x07060302")
    A("s_mov_b32 s62, 0x3db504f3")
    A("s_mov_b32 s63, 0x3fb8aa3b")
    A("s_getreg_b32 s47, hwreg(HW_REG_XCC_ID)")
    A("s_and_b32 s47, s47, 15")
    A("s_lshl_b32 s58, s52, 8")
    A("s_lshl_b32 s59, s3, 5")
    A("s_add_u32 s58, s58, s59")
    A("s_mul_i32 s58, s58, 1152")
    A("s_lshl_b32 s59, s53, 7")
    A("s_add_u32 s58, s58, s59")
    A("s_cmp_lt_u32 s53, 9")
    A("s_cselect_b32 s38, %d, 0" % (0 if "nowo" in abl else 35840))
    A("s_cselect_b32 s58, s58, 0")
    A("s_mov_b32 s39, 0x20000")
    A("s_add_u32 s36, s12, s58")
    A("s_addc_u32 s37, s13, 0")
    A("v_lshrrev_b32 v14, 3, v1")
    A("v_mul_u32_u24 v14, 1152, v14")
    A("v_and_b32 v13, 7, v1")
    A("v_lshl_add_u32 v14, v13, 4, v14")
    A("s_lshl_b32 s65, s3, 12")
    A("s_add_u32 s65, s65, %d" % WOS)

    def issue_wo1(p, e):
        p.a(f"s_add_u32 m0, s65, {1024*e}")
        p.a(f"s_mov_b32 s57, {8*1152*e}")
        p.vm(f"buffer_load_dwordx4 v14, {SWO}, s57 offen nt lds", "wo")

    A("s_mov_b32 s40, s18")
    A("s_mov_b32 s41, s19")
    A("s_mov_b32 s42, %d" % WS_BYTES)
    A("s_mov_b32 s43, 0x20000")
    A("s_mov_b32 s48, s14")
    A("s_mov_b32 s49, s15")
    A("s_mov_b32 s50, 18432")
    A("s_mov_b32 s51, 0x20000")
    A("v_lshrrev_b32 v54, 2, v2")
    A("v_lshl_add_u32 v54, v3, 3, v54")
    A("v_lshlrev_b32 v54, 5, v54")
    A("v_and_b32 v13, 3, v2")
    A("v_lshl_add_u32 v54, v13, 3, v54")
    A("s_lshl_b32 s59, s3, 10")
    A("s_add_u32 s59, s59, %d" % QR)
    A("v_add_u32 v55, s59, v12")

    def q_compute(p, count=False):
        p.a("v_add_u32 v13, s75, v54")
        p.a("v_add_u32 v15, s74, v54")
        p.a("ds_read_b64_tr_b16 v[96:97], v13")
        p.a("ds_read_b64_tr_b16 v[98:99], v13 offset:128")
        p.a("ds_read_b64_tr_b16 v[100:101], v13 offset:8192")
        p.a("ds_read_b64_tr_b16 v[102:103], v13 offset:8320")
        p.a("ds_read_b64_tr_b16 v[104:105], v15")
        p.a("ds_read_b64_tr_b16 v[106:107], v15 offset:128")
        p.a("s_waitcnt lgkmcnt(4)")
        p.a("v_mfma_f32_16x16x32_bf16 v[48:51], v[96:99], v[32:35], 0")
        p.a("s_waitcnt lgkmcnt(2)")
        p.a("v_mfma_f32_16x16x32_bf16 v[48:51], v[100:103], v[36:39], v[48:51]")
        p.a("s_waitcnt lgkmcnt(0)")
        p.a("v_mfma_f32_16x16x32_bf16 v[48:51], v[104:107], v[40:43], v[48:51]")
        p.a("v_mov_b32 v13, %d" % FL)
        p.a("v_mov_b32 v16, 1")
        p.a("s_nop 6")
        p.a("ds_write_b128 v55, v[48:51]")
        if count:
            p.a("s_mov_b64 exec, 1")
            p.a("ds_add_u32 v13, v16 offset:12")
            p.a("s_mov_b64 exec, -1")

    A("s_waitcnt lgkmcnt(0)")
    A("s_add_u32 s44, s44, 1")
    A("s_addc_u32 s45, s45, 0")
    A("s_barrier")
    if yprio:
        A("s_cmp_lt_u32 s3, 4")
        A("s_cbranch_scc1 L_noprio")
        A(f"s_setprio {yprio}")
        LBL("L_noprio")
    if "nopub" not in abl:
        A("s_cmp_eq_u32 s3, 0")
        A("s_cbranch_scc1 L_w0")
    if "nopoll" not in abl:
        A("s_cmp_eq_u32 s3, 1")
        A("s_cbranch_scc1 L_w1")
    if "nocode" not in abl:
        A("s_lshl_b32 s57, s53, 3")
        A("s_add_u32 s57, s57, s3")
        A("s_cmp_eq_u32 s57, 2")
        A("s_cbranch_scc1 L_w2")
    q0 = list(p0.q)

    def read_k(p, bi):
        for jj in range(4):
            r = 128 + 16 * bi + 4 * jj
            p.a(f"ds_read_b128 v[{r}:{r+3}], v{8+jj} offset:{(bi % 3) * 4096}")

    def vreg(hb):
        return 64 + 16 * hb

    def issue_v1(p, n):
        hb, i = n // 4, n % 4
        r = vreg(hb) + 4 * i
        p.vm(f"buffer_load_dwordx4 v[{r}:{r+3}], v12, {SV}, s55 offen offset:{i*1024} nt", f"v{hb}")
        if i == 3:
            p.a("s_add_u32 s55, s55, 0x8000")

    def q_publish(p, tag):
        p.a("v_add_u32 v13, %d, v12" % QR)
        for w in range(8):
            p.a(f"ds_read_b128 v[{96+4*w}:{99+4*w}], v13 offset:{1024*w}")
        p.a("s_lshl_b32 s57, s52, 14")
        p.a("s_lshl_b32 s58, s46, 6")
        p.a("s_add_u32 s57, s57, s58")
        p.a("v_lshlrev_b32 v13, 10, v2")
        p.a("v_lshl_add_u32 v13, v3, 4, v13")
        p.a("s_add_u32 s58, s45, s47")
        p.a("v_mov_b32 v17, s44")
        p.a("v_mov_b32 v19, s58")
        p.a("s_waitcnt lgkmcnt(6)")
        for r in range(4):
            p.a(f"v_add_f32 v{96+r}, v{96+r}, v{100+r}")
        p.a("s_waitcnt lgkmcnt(4)")
        for r in range(4):
            p.a(f"v_add_f32 v{104+r}, v{104+r}, v{108+r}")
        p.a("s_waitcnt lgkmcnt(2)")
        for r in range(4):
            p.a(f"v_add_f32 v{112+r}, v{112+r}, v{116+r}")
        for r in range(4):
            p.a(f"v_add_f32 v{96+r}, v{96+r}, v{104+r}")
        p.a("s_waitcnt lgkmcnt(0)")
        for r in range(4):
            p.a(f"v_add_f32 v{120+r}, v{120+r}, v{124+r}")
        for r in range(4):
            p.a(f"v_add_f32 v{112+r}, v{112+r}, v{120+r}")
        for r in range(4):
            p.a(f"v_add_f32 v{96+r}, v{96+r}, v{112+r}")
        p.a("v_cvt_pk_bf16_f32 v16, v96, v97")
        p.a("v_cvt_pk_bf16_f32 v18, v98, v99")
        if tag:
            p.vm(f"buffer_store_dwordx4 v[16:19], v13, {SWS}, s57 offen{qst}", tag)
        else:
            p.a(f"buffer_store_dwordx4 v[16:19], v13, {SWS}, s57 offen{qst}")

    NVPRE = 8

    def kphase(p, wadd=0, polls=(), poll_issue=None, poll_check=None, pubs=(), pub_try=None):
        st = {"read": 0, "poll": 0, "m0": True, "qc": False}

        def service(nissued):
            if not st["qc"] and not p.pending("wq"):
                stamp(4)
                q_compute(p, True)
                st["qc"] = True
            while st["read"] < 8 and 4 * st["read"] + 4 <= nissued and not p.pending(f"k{st['read']}"):
                read_k(p, st["read"])
                st["read"] += 1
        for n in range(wkinit, 32):
            w = (wk0 if n < nslow else wk1) + wadd
            nk = sum(1 for t in p.q if t != "wq")
            if nk >= w:
                p.throttle(w - 1)
            if st["poll"] and n >= st["poll"] + 2:
                k = p.count - st["mark"]
                poll_check(p, st["poll"], k)
                st["poll"] = 0
            if n == 8 and not st["qc"]:
                p.wait("wq")
            service(n)
            if n in pubs and st["qc"]:
                pub_try(p, n)
            if n in polls and not st["poll"]:
                poll_issue(p, n)
                st["poll"] = n
                st["mark"] = p.count
            if n % 4 == 0 and n // 4 >= 3 and st["read"] <= n // 4 - 3:
                p.wait(f"k{n // 4 - 3}")
                service(n)
            assert n % 4 or n // 4 < 3 or st["read"] > n // 4 - 3
            issue_k1(p, n, force_m0=not st["m0"])
            st["m0"] = True
            if n + 1 == wo_at:
                for e in range(4):
                    p.throttle(w - 1)
                    service(n + 1)
                    issue_wo1(p, e)
                st["m0"] = False
        for n in range(NVPRE):
            p.throttle(wk1 + wadd - 1)
            service(32)
            issue_v1(p, n)
        p.wait("k7")
        service(32)
        assert st["read"] == 8 and st["poll"] == 0
        p.throttle(wk1 - 1)

    LBL("L_gen")
    p = Path(out, q0)
    kphase(p)
    endq = list(p.q)
    p.a("s_branch L_join")

    LBL("L_w2")
    p = Path(out, q0)
    p.a("s_getpc_b64 s[58:59]")
    LBL("L_pc")
    p.a("s_sub_u32 s58, s58, L_pc-%s" % KNAME)
    p.a("s_subb_u32 s59, s59, 0")
    p.a("v_lshlrev_b32 v13, 7, v1")
    p.vm("global_load_dword v16, v13, s[58:59]", "code")
    p.a("v_add_u32 v13, 0x2000, v13")
    p.a("v_min_u32 v13, L_end-%s, v13" % KNAME)
    p.vm("global_load_dword v17, v13, s[58:59]", "code")
    kphase(p)
    assert p.q == endq, (p.q, endq)
    p.a("s_branch L_join")

    LBL("L_w0")
    p = Path(out, q0)
    p.a("s_mov_b32 s79, 0")

    def pub_try(p, n, last=False):
        p.a("s_cmp_lg_u32 s79, 0")
        p.a(f"s_cbranch_scc1 L_pu{n}")
        p.a("v_mov_b32 v13, %d" % FL)
        LBL(f"L_pw{n}")
        p.a("ds_read_b32 v16, v13 offset:12")
        p.a("s_waitcnt lgkmcnt(0)")
        p.a("v_readfirstlane_b32 s57, v16")
        p.a("s_cmp_lt_u32 s57, 8")
        p.a(f"s_cbranch_scc1 {'L_pw%d' % n if last else 'L_pu%d' % n}")
        p.a("s_setprio 3")
        q_publish(p, None)
        p.a("s_setprio 0")
        p.a("s_mov_b32 s79, 1")
        stamp(5)
        LBL(f"L_pu{n}")

    lastpub = max(qpubs)
    kphase(p, wadd=w0add, pubs=qpubs, pub_try=lambda pp, n: pub_try(pp, n, n == lastpub))
    assert p.q == endq, (p.q, endq)
    p.a("s_branch L_join")

    LBL("L_w1")
    p = Path(out, q0)

    def q_poll_load(p):
        p.a("s_lshl_b32 s57, s52, 14")
        p.a("s_lshl_b32 s58, s53, 10")
        p.a("s_add_u32 s57, s57, s58")
        p.a(f"buffer_load_dwordx4 v[16:19], v12, {SWS}, s57 offen{qld}")

    def q_check(p):
        p.a("v_subrev_u32 v21, s45, v19")
        p.a("v_xor_b32 v20, s44, v17")
        p.a("v_lshrrev_b32 v22, 4, v21")
        p.a("v_or_b32 v20, v20, v22")
        p.a("v_cmp_ne_u32 vcc, 0, v20")
        p.a("s_nop 1")

    def q_finish(p):
        p.a("v_mov_b32 v17, v18")
        p.a("v_lshlrev_b32 v13, 3, v1")
        p.a("v_add_u32 v13, %d, v13" % QB)
        p.a("ds_write_b64 v13, v[16:17]")

    def q_success(p):
        q_finish(p)
        p.a("v_cmp_ne_u32 vcc, s47, v21")
        p.a("s_nop 1")
        p.a("s_cmp_lg_u64 vcc, 0")
        p.a("s_cselect_b32 s57, 1, 0")
        p.a("v_mov_b32 v56, s57")
        p.a("s_mov_b32 s79, 1")

    def q_flag(p):
        p.a("v_mov_b32 v57, s79")
        p.a("v_mov_b32 v13, %d" % FL)
        p.a("s_waitcnt lgkmcnt(0)")
        p.a("s_mov_b64 exec, 1")
        p.a("ds_write_b64 v13, v[56:57]")
        p.a("s_mov_b64 exec, -1")

    def poll_issue(p, n):
        p.a("s_cmp_lg_u32 s79, 0")
        p.a(f"s_cbranch_scc1 L_pi{n}")
        q_poll_load(p)
        LBL(f"L_pi{n}")

    def poll_check(p, n, k):
        p.a("s_cmp_lg_u32 s79, 0")
        p.a(f"s_cbranch_scc1 L_pc{n}")
        p.a(f"s_waitcnt vmcnt({k})")
        q_check(p)
        if force_fallback:
            p.a(f"s_branch L_pc{n}")
        p.a("s_cmp_lg_u64 vcc, 0")
        p.a(f"s_cbranch_scc1 L_pc{n}")
        q_success(p)
        q_flag(p)
        stamp(6)
        LBL(f"L_pc{n}")

    p.a("s_mov_b32 s79, 0")
    kphase(p, wadd=w1add, polls=qpolls, poll_issue=poll_issue, poll_check=poll_check)
    assert p.q == endq, (p.q, endq)
    if "nopub" in abl:
        p.a("s_branch L_join")
    p.a("s_cmp_lg_u32 s79, 0")
    p.a("s_cbranch_scc1 L_join")
    p.a("s_mov_b32 s64, 0")
    LBL("L_qretry")
    q_poll_load(p)
    p.a("s_waitcnt vmcnt(0)")
    q_check(p)
    if not force_fallback:
        p.a("s_cmp_eq_u64 vcc, 0")
        p.a("s_cbranch_scc1 L_qok")
    p.a("s_add_u32 s64, s64, 1")
    p.a("s_cmp_le_u32 s64, %d" % (QSPIN_MAX if not force_fallback else 1))
    p.a("s_cbranch_scc1 L_qretry")
    p.a("s_mov_b32 s79, 2")
    p.a("v_mov_b32 v56, 1")
    p.a("s_branch L_qflag")
    LBL("L_qok")
    q_success(p)
    LBL("L_qflag")
    q_flag(p)

    LBL("L_join")
    p = Path(out, endq)
    p.a("v_mov_b32 v58, %d" % FL)
    p.a("v_and_b32 v13, 1, v1")
    p.a("v_lshlrev_b32 v13, 8, v13")
    p.a("v_lshl_add_u32 v13, v3, 4, v13")
    p.a("v_add_u32 v14, %d, v13" % QB)
    p.a("s_lshl_b32 s57, s3, 9")
    p.a("s_add_u32 s57, s57, %d" % PB)
    p.a("v_add_u32 v59, s57, v13")
    LBL("L_qwait")
    p.a("ds_read_b64 v[56:57], v58")
    for jj in range(4):
        p.a(f"ds_read_b128 v[{16+4*jj}:{19+4*jj}], v14 offset:{64*jj}")
    p.a("s_waitcnt lgkmcnt(4)")
    p.a("v_readfirstlane_b32 s78, v56")
    p.a("v_readfirstlane_b32 s79, v57")
    if not ({"noq", "nopub", "nopoll"} & set(abl)):
        p.a("s_cmp_eq_u32 s79, 0")
        p.a("s_cbranch_scc1 L_qwait")
        p.a("s_cmp_eq_u32 s79, 2")
        p.a("s_cbranch_scc1 L_fallback")
    LBL("L_qk")
    stamp(1)
    for n in range(8, 8 + vburst):
        issue_v1(p, n)
    p.a("v_mov_b32 v15, v59")
    p.a("s_lshl_b32 s57, s3, 9")
    p.a("s_add_u32 s57, s57, %d" % PB)
    p.a("v_and_b32 v13, 1, v3")
    p.a("v_lshlrev_b32 v13, 8, v13")
    p.a("v_and_b32 v14, 3, v2")
    p.a("v_lshl_add_u32 v13, v14, 4, v13")
    p.a("v_lshrrev_b32 v14, 2, v2")
    p.a("v_lshl_add_u32 v13, v14, 1, v13")
    p.a("v_add_u32 v13, s57, v13")
    p.a("v_and_b32 v14, 1, v3")
    p.a("v_cmp_eq_u32 s[76:77], 1, v14")
    p.a("s_waitcnt lgkmcnt(0)")
    for bi in range(8):
        for jj in range(4):
            c = "0" if jj == 0 else f"v[{32+4*bi}:{35+4*bi}]"
            r = 128 + 16 * bi + 4 * jj
            p.a(f"v_mfma_f32_16x16x32_bf16 v[{32+4*bi}:{35+4*bi}], v[{16+4*jj}:{19+4*jj}], v[{r}:{r+3}], {c}")
    for n in range(8 + vburst, 16):
        issue_v1(p, n)
    p.a("s_nop 7")
    for bi in range(8):
        d = 32 + 4 * bi
        p.a(f"v_cvt_pk_bf16_f32 v{d+2}, v{d}, v{d+1}")
    for bi in range(8):
        d = 32 + 4 * bi
        p.a(f"v_lshlrev_b32 v{d}, 16, v{d+2}")
        p.a(f"v_and_b32 v{d+1}, 0xffff0000, v{d+2}")
    for bi in range(8):
        d = 32 + 4 * bi
        p.a(f"v_mul_f32 v{d}, s62, v{d}")
        p.a(f"v_mul_f32 v{d+1}, s62, v{d+1}")
    for bi in range(8):
        d = 32 + 4 * bi
        p.a(f"v_cvt_pk_bf16_f32 v{d+2}, v{d}, v{d+1}")
    for bi in range(8):
        d = 32 + 4 * bi
        p.a(f"v_lshlrev_b32 v{d}, 16, v{d+2}")
        p.a(f"v_and_b32 v{d+1}, 0xffff0000, v{d+2}")
    for h, m in ((0, 16), (1, 18)):
        p.a(f"v_max3_f32 v{m}, v{32+h}, v{36+h}, v{40+h}")
        p.a(f"v_max3_f32 v{m+1}, v{44+h}, v{48+h}, v{52+h}")
    for h, m in ((0, 16), (1, 18)):
        p.a(f"v_max3_f32 v{m}, v{m}, v{56+h}, v{60+h}")
    for h, m in ((0, 16), (1, 18)):
        p.a(f"v_max_f32 v{m}, v{m}, v{m+1}")
    for sh in (8, 4, 2, 1):
        p.a("s_nop 0")
        for m in (16, 18):
            p.a(f"v_max_f32_dpp v{m}, v{m}, v{m} row_ror:{sh} row_mask:0xf bank_mask:0xf")
    for bi in range(8):
        d = 32 + 4 * bi
        p.a(f"v_sub_f32 v{d}, v{d}, v16")
        p.a(f"v_sub_f32 v{d+1}, v{d+1}, v18")
    for bi in range(8):
        d = 32 + 4 * bi
        p.a(f"v_mul_f32 v{d}, s63, v{d}")
        p.a(f"v_mul_f32 v{d+1}, s63, v{d+1}")
    for bi in range(8):
        d = 32 + 4 * bi
        p.a(f"v_exp_f32 v{d}, v{d}")
        p.a(f"v_exp_f32 v{d+1}, v{d+1}")
    for bi in range(8):
        d = 32 + 4 * bi
        p.a(f"v_cndmask_b32 v{d+2}, v{d}, v{d+1}, s[76:77]")
    for bi in range(8):
        d = 32 + 4 * bi
        p.a(f"v_cvt_pk_bf16_f32 v{d+2}, v{d+2}, v{d+2}")
    for bi in range(8):
        d = 32 + 4 * bi
        p.a(f"ds_write_b16 v13, v{d+2} offset:{(bi >> 1)*64 + (bi & 1)*8}")
    for h, l in ((0, 17), (1, 19)):
        p.a(f"v_add_f32 v{l}, v{32+h}, v{36+h}")
        p.a(f"v_add_f32 v{20+h}, v{40+h}, v{44+h}")
        p.a(f"v_add_f32 v{22+h}, v{48+h}, v{52+h}")
        p.a(f"v_add_f32 v{24+h}, v{56+h}, v{60+h}")
    for h, l in ((0, 17), (1, 19)):
        p.a(f"v_add_f32 v{l}, v{l}, v{20+h}")
        p.a(f"v_add_f32 v{22+h}, v{22+h}, v{24+h}")
    for h, l in ((0, 17), (1, 19)):
        p.a(f"v_add_f32 v{l}, v{l}, v{22+h}")
    for sh in (8, 4, 2, 1):
        p.a("s_nop 0")
        for l in (17, 19):
            p.a(f"v_add_f32_dpp v{l}, v{l}, v{l} row_ror:{sh} row_mask:0xf bank_mask:0xf")
    p.a("s_lshl_b32 s57, s3, 4")
    p.a("s_add_u32 s57, s57, %d" % ST)
    p.a("v_mov_b32 v14, s57")
    p.a("v_mov_b32 v240, v16")
    p.a("v_mov_b32 v241, v18")
    p.a("v_mov_b32 v246, %d" % FL)
    p.a("v_mov_b32 v247, 1")
    p.a("s_mov_b64 exec, 1")
    p.a("ds_write_b128 v14, v[16:19]")
    p.a("ds_add_u32 v246, v247 offset:8")
    p.a("s_mov_b64 exec, -1")
    p.a("s_waitcnt lgkmcnt(0)")
    for mm in range(4):
        p.a(f"ds_read_b128 v[{16+4*mm}:{19+4*mm}], v15 offset:{64*mm}")

    def pv(p, mm):
        def src(i, dw):
            return vreg(2 * mm + (i >> 2)) + 4 * (i & 3) + dw
        tbuf = [192, 196, 200, 204]

        def perms(j):
            tb = tbuf[j % 4]
            for d in range(4):
                p.a(f"v_perm_b32 v{tb+d}, v{src(2*d+1, j >> 1)}, v{src(2*d, j >> 1)}, {'s61' if j & 1 else 's60'}")

        def mf(j):
            tb = tbuf[j % 4]
            c = "0" if mm == 0 else f"v[{32+4*j}:{35+4*j}]"
            p.a(f"v_mfma_f32_16x16x32_bf16 v[{32+4*j}:{35+4*j}], v[{16+4*mm}:{19+4*mm}], v[{tb}:{tb+3}], {c}")
        perms(0)
        for j in range(8):
            if j + 1 < 8:
                perms(j + 1)
            else:
                p.a("s_nop 1")
            mf(j)

    done = 0
    first = True
    for n in range(16, 32):
        p.throttle(wv - 1)
        while done < 3 and not p.pending(f"v{2*done}") and not p.pending(f"v{2*done+1}") and 8 * done + 8 <= n:
            if first:
                p.a("s_waitcnt lgkmcnt(0)")
                first = False
            pv(p, done)
            done += 1
        issue_v1(p, n)
    while done < 3:
        p.wait(f"v{2*done+1}")
        if first:
            p.a("s_waitcnt lgkmcnt(0)")
            first = False
        pv(p, done)
        done += 1
    p.a("v_mov_b32 v14, %d" % ST)
    LBL("L_stwait")
    p.a("ds_read_b32 v247, v246 offset:8")
    for w in range(8):
        p.a(f"ds_read_b128 v[{208+4*w}:{211+4*w}], v14 offset:{16*w}")
    p.a("s_waitcnt lgkmcnt(8)")
    p.a("v_readfirstlane_b32 s57, v247")
    p.a("s_cmp_lt_u32 s57, 8")
    p.a("s_cbranch_scc1 L_stwait")
    p.a("s_waitcnt lgkmcnt(0)")
    for h in range(2):
        M = 244 + h
        p.a(f"v_max3_f32 v{M}, v{208+2*h}, v{212+2*h}, v{216+2*h}")
        p.a(f"v_max3_f32 v{M}, v{M}, v{220+2*h}, v{224+2*h}")
        p.a(f"v_max3_f32 v{M}, v{M}, v{228+2*h}, v{232+2*h}")
        p.a(f"v_max_f32 v{M}, v{M}, v{236+2*h}")
    for h in range(2):
        M = 244 + h
        for w in range(8):
            p.a(f"v_sub_f32 v{208+4*w+2*h}, v{208+4*w+2*h}, v{M}")
        p.a(f"v_sub_f32 v{240+h}, v{240+h}, v{M}")
    for h in range(2):
        for w in range(8):
            p.a(f"v_mul_f32 v{208+4*w+2*h}, s63, v{208+4*w+2*h}")
        p.a(f"v_mul_f32 v{240+h}, s63, v{240+h}")
    for h in range(2):
        for w in range(8):
            p.a(f"v_exp_f32 v{208+4*w+2*h}, v{208+4*w+2*h}")
        p.a(f"v_exp_f32 v{240+h}, v{240+h}")
    for h in range(2):
        p.a(f"v_mul_f32 v{242+h}, v{208+2*h}, v{209+2*h}")
    for w in range(1, 8):
        for h in range(2):
            p.a(f"v_fmac_f32 v{242+h}, v{208+4*w+2*h}, v{209+4*w+2*h}")
    for h in range(2):
        p.a(f"v_rcp_f32 v{242+h}, v{242+h}")
    p.a("s_nop 0")
    for h in range(2):
        p.a(f"v_mul_f32 v{242+h}, v{242+h}, v{240+h}")
    p.a("s_lshl_b32 s57, s3, 10")
    p.a("s_add_u32 s57, s57, %d" % OP)
    p.a("v_lshlrev_b32 v14, 5, v2")
    p.a("v_add_u32 v14, s57, v14")
    p.wait("v7")
    stamp(2)
    pv(p, 3)
    p.a("s_nop 4")
    for j in range(8):
        if j == 6:
            p.a("s_nop 3")
        for h in range(2):
            p.a(f"v_mul_f32 v{64+8*h+j}, v{242+h}, v{32+4*j+h}")
    p.a("s_mov_b64 exec, 0xffff")
    for h in range(2):
        for half in range(2):
            p.a(f"ds_write_b128 v14, v[{64+8*h+4*half}:{67+8*h+4*half}] offset:{512*h+16*half}")
    p.a("s_mov_b64 exec, -1")
    p.a("s_waitcnt lgkmcnt(0)")
    p.a("s_barrier")
    stamp(7)
    if "notail" in abl:
        p.a("s_branch L_fin")
    p.a("s_cmp_eq_u32 s3, 0")
    p.a("s_cbranch_scc1 L_reduce")
    p.a("s_cmp_ge_u32 s53, 9")
    p.a("s_cbranch_scc1 L_fin")
    p.a("s_cmp_ge_u32 s3, 4")
    p.a("s_cbranch_scc1 L_stageA")
    p.a("s_cmp_eq_u32 s3, 1")
    p.a("s_cbranch_scc1 L_final")
    p.a("s_branch L_fin")

    LBL("L_reduce")
    A("s_setprio 3")
    A("v_add_u32 v14, %d, v12" % OP)
    for w in range(8):
        A(f"ds_read_b128 v[{64+4*w}:{67+4*w}], v14 offset:{1024*w}")
    A("s_lshl_b32 s57, s52, 14")
    A("s_lshl_b32 s58, s53, 4")
    A("s_add_u32 s57, s57, s58")
    A("s_add_u32 s57, s57, %d" % WS_OM)
    A("v_lshrrev_b32 v13, 3, v1")
    A("v_lshlrev_b32 v13, 11, v13")
    A("v_and_b32 v15, 1, v1")
    A("v_lshl_add_u32 v13, v15, 10, v13")
    A("v_bfe_u32 v15, v1, 1, 2")
    A("v_lshl_add_u32 v13, v15, 8, v13")
    A("v_mov_b32 v17, s44")
    A("v_mov_b32 v19, s45")
    A("s_waitcnt lgkmcnt(6)")
    for r in range(4):
        A(f"v_add_f32 v{64+r}, v{64+r}, v{68+r}")
    A("s_waitcnt lgkmcnt(4)")
    for r in range(4):
        A(f"v_add_f32 v{72+r}, v{72+r}, v{76+r}")
    A("s_waitcnt lgkmcnt(2)")
    for r in range(4):
        A(f"v_add_f32 v{80+r}, v{80+r}, v{84+r}")
    for r in range(4):
        A(f"v_add_f32 v{64+r}, v{64+r}, v{72+r}")
    A("s_waitcnt lgkmcnt(0)")
    for r in range(4):
        A(f"v_add_f32 v{88+r}, v{88+r}, v{92+r}")
    for r in range(4):
        A(f"v_add_f32 v{80+r}, v{80+r}, v{88+r}")
    for r in range(4):
        A(f"v_add_f32 v{64+r}, v{64+r}, v{80+r}")
    A("v_cvt_pk_bf16_f32 v16, v64, v65")
    A("v_cvt_pk_bf16_f32 v18, v66, v67")
    stamp(8)
    if fast:
        A("s_cmp_eq_u32 s78, 0")
        A("s_cbranch_scc1 L_red_fast")
    A(f"buffer_store_dwordx4 v[16:19], v13, {SWS}, s57 offen sc1")
    A("s_branch L_fin")
    if fast:
        LBL("L_red_fast")
        A(f"buffer_store_dwordx4 v[16:19], v13, {SWS}, s57 offen{ast}")
        A("s_branch L_fin")

    def tagpieces():
        A("s_and_b32 s80, s44, 0xfff")
        A("s_bfe_u32 s81, s44, 0xc000c")
        A("s_lshr_b32 s82, s44, 24")
        A("s_lshl_b32 s83, s45, 8")
        A("s_or_b32 s82, s82, s83")
        A("s_and_b32 s82, s82, 0xfff")
        A("s_bfe_u32 s83, s45, 0xc0004")

    LBL("L_stageA")
    A("s_sub_u32 s59, s3, 4")
    A("s_lshl_b32 s57, s52, 14")
    A("s_lshl_b32 s58, s59, 12")
    A("s_add_u32 s57, s57, s58")
    A("s_add_u32 s57, s57, %d" % WS_OM)

    def sa_loads():
        for ks in range(2):
            for h in range(2):
                r = 64 + 8 * ks + 4 * h
                A(f"buffer_load_dwordx4 v[{r}:{r+3}], v12, {SWS}, s57 offen offset:{2048*ks+1024*h}{ald}")
    sa_loads()
    A("v_lshrrev_b32 v14, 2, v2")
    A("v_lshl_add_u32 v14, v3, 3, v14")
    A("v_lshlrev_b32 v14, 7, v14")
    A("v_and_b32 v13, 3, v2")
    A("v_lshl_add_u32 v14, v13, 3, v14")
    A("s_lshl_b32 s58, s59, 13")
    A("s_add_u32 s58, s58, %d" % WOS)
    A("v_add_u32 v14, s58, v14")
    for t in range(4):
        for ks in range(2):
            for h in range(2):
                r = 128 + 8 * t + 4 * ks + 2 * h
                A(f"ds_read_b64_tr_b16 v[{r}:{r+1}], v14 offset:{4096*ks+512*h+32*t}")
    A("s_lshl_b32 s58, s53, 2")
    A("s_add_u32 s58, s58, s59")
    A("s_lshl_b32 s58, s58, 4")
    A("s_add_u32 s58, s58, s52")
    A("s_lshl_b32 s58, s58, 10")
    A("s_add_u32 s58, s58, %d" % WS_PM)
    A("s_mul_i32 s80, s59, 4608")
    A("v_mul_u32_u24 v20, 272, v3")
    A("v_lshl_add_u32 v20, v2, 4, v20")
    A("v_add_u32 v20, s80, v20")
    A("v_mul_u32_u24 v21, 272, v2")
    A("v_lshl_add_u32 v21, v3, 4, v21")
    A("s_lshl_b32 s80, s59, 6")
    A("v_add_u32 v21, s80, v21")
    tagpieces()
    A("v_mov_b32 v22, 0xfff")
    A("s_mov_b32 s64, 0")
    LBL("L_sa_poll")
    for gi in range(4):
        r = 64 + 4 * gi
        A(f"s_waitcnt vmcnt({3-gi})")
        A(f"v_xor_b32 v17, s44, v{r+1}")
        A(f"v_xor_b32 v18, s45, v{r+3}")
        if gi == 0:
            A("v_or_b32 v16, v17, v18")
        else:
            A("v_or3_b32 v16, v16, v17, v18")
        A(f"v_mov_b32 v{160+2*gi}, v{r}")
        A(f"v_mov_b32 v{161+2*gi}, v{r+2}")
    A("v_cmp_ne_u32 vcc, 0, v16")
    A("s_nop 1")
    A("s_cmp_eq_u64 vcc, 0")
    A("s_cbranch_scc1 L_sa_go")
    A("s_add_u32 s64, s64, 1")
    A("s_cmp_gt_u32 s64, %d" % SPIN_MAX)
    A("s_cbranch_scc1 L_sa_go")
    sa_loads()
    A("s_branch L_sa_poll")
    LBL("L_sa_go")
    stamp(8)
    A("s_waitcnt lgkmcnt(0)")
    for ks in range(2):
        for t in range(4):
            r = 128 + 8 * t + 4 * ks
            c = "0" if ks == 0 else f"v[{32+4*t}:{35+4*t}]"
            A(f"v_mfma_f32_16x16x32_bf16 v[{32+4*t}:{35+4*t}], v[{r}:{r+3}], v[{160+4*ks}:{163+4*ks}], {c}")
    A("s_nop 4")
    for t in range(4):
        if t:
            A("s_nop 0")
        A(f"ds_write_b128 v20, v[{32+4*t}:{35+4*t}] offset:{1088*t}")
    A("s_waitcnt lgkmcnt(0)")
    A("s_barrier")
    for w in range(4):
        A(f"ds_read_b128 v[{32+4*w}:{35+4*w}], v21 offset:{4608*w}")
    A("s_waitcnt lgkmcnt(2)")
    for r in range(4):
        A(f"v_add_f32 v{32+r}, v{32+r}, v{36+r}")
    A("s_waitcnt lgkmcnt(0)")
    for r in range(4):
        A(f"v_add_f32 v{40+r}, v{40+r}, v{44+r}")
    for r in range(4):
        A(f"v_add_f32 v{32+r}, v{32+r}, v{40+r}")
    for r in range(4):
        A(f"v_bfi_b32 v{32+r}, v22, s{80+r}, v{32+r}")
    A(f"buffer_store_dwordx4 v[32:35], v12, {SWS}, s58 offen{bst}")
    stamp(9)
    A("s_branch L_fin")

    LBL("L_final")
    A("s_mul_i32 s57, s52, 9")
    A("s_add_u32 s57, s57, s53")
    A("s_lshr_b32 s58, s57, 2")
    A("s_lshl_b32 s58, s58, 14")
    A("s_and_b32 s59, s57, 3")
    A("s_lshl_b32 s59, s59, 8")
    A("s_add_u32 s72, s58, s59")
    A("s_add_u32 s72, s72, %d" % WS_PM)
    A("s_add_u32 s73, s72, 4096")
    A("s_add_u32 s74, s72, 8192")
    A("s_add_u32 s75, s72, 12288")
    A("v_lshlrev_b32 v14, 10, v3")
    A("v_lshl_add_u32 v14, v2, 4, v14")
    A("s_and_b32 s58, s57, 15")
    A("s_mul_i32 s58, s58, 1152")
    A("s_lshr_b32 s59, s57, 4")
    A("s_lshl_b32 s59, s59, 7")
    A("s_add_u32 s58, s58, s59")
    A("v_lshlrev_b32 v15, 3, v2")
    tagpieces()
    A("s_mov_b32 s64, 0")
    A("s_mov_b32 s79, 0xf")
    A("s_barrier")
    LBL("L_fi_poll")
    for j in range(4):
        r = 64 + 4 * j
        A(f"s_bitcmp0_b32 s79, {j}")
        A(f"s_cbranch_scc1 L_fl{j}")
        A(f"buffer_load_dwordx4 v[{r}:{r+3}], v14, {SWS}, s{72+j} offen{bld}")
        LBL(f"L_fl{j}")
    A("s_waitcnt vmcnt(0)")
    for j in range(4):
        r = 64 + 4 * j
        A(f"s_bitcmp0_b32 s79, {j}")
        A(f"s_cbranch_scc1 L_fc{j}")
        A(f"v_xor_b32 v16, s80, v{r}")
        A(f"v_xor_b32 v17, s81, v{r+1}")
        A(f"v_xor_b32 v18, s82, v{r+2}")
        A(f"v_xor_b32 v19, s83, v{r+3}")
        A("v_or3_b32 v20, v16, v17, v18")
        A("v_or_b32 v20, v20, v19")
        A("v_and_b32 v20, 0xfff, v20")
        A("v_cmp_ne_u32 vcc, 0, v20")
        A("s_nop 1")
        A("s_cmp_lg_u64 vcc, 0")
        A(f"s_cbranch_scc1 L_fc{j}")
        for d in range(4):
            A(f"v_mov_b32 v{r+d}, v{16+d}")
        A(f"s_bitset0_b32 s79, {j}")
        LBL(f"L_fc{j}")
    A("s_cmp_eq_u32 s79, 0")
    A("s_cbranch_scc1 L_fi_go")
    if fsleep:
        A(f"s_sleep {fsleep}")
    A("s_add_u32 s64, s64, 1")
    A("s_cmp_le_u32 s64, %d" % SPIN_MAX)
    A("s_cbranch_scc1 L_fi_poll")
    LBL("L_fi_go")
    stamp(9)
    for d in range(4):
        A(f"v_add_f32 v{64+d}, v{64+d}, v{68+d}")
        A(f"v_add_f32 v{72+d}, v{72+d}, v{76+d}")
    for d in range(4):
        A(f"v_add_f32 v{20+d}, v{64+d}, v{72+d}")
    for d in range(4):
        A(f"v_add_f32 v{24+d}, v{64+d}, v{72+d}")
    for d in range(4):
        A(f"v_permlane32_swap_b32 v{20+d}, v{24+d}")
    A("s_nop 0")
    for d in range(4):
        A(f"v_add_f32 v{28+d}, v{20+d}, v{24+d}")
    for d in range(4):
        A(f"v_add_f32 v{20+d}, v{20+d}, v{24+d}")
    for d in range(4):
        A(f"v_permlane16_swap_b32 v{28+d}, v{20+d}")
    A("s_nop 0")
    for d in range(4):
        A(f"v_add_f32 v{20+d}, v{20+d}, v{28+d}")
    A("v_cvt_pk_bf16_f32 v16, v20, v21")
    A("v_cvt_pk_bf16_f32 v17, v22, v23")
    A("s_mov_b64 exec, 0xffff")
    A(f"buffer_store_dwordx2 v[16:17], v15, {SOUT}, s58 offen")
    A("s_mov_b64 exec, -1")
    A("s_cmp_lg_u32 s2, 0")
    A("s_cbranch_scc1 L_fin")
    A("v_mov_b32 v20, s44")
    A("v_mov_b32 v21, s45")
    A("v_mov_b32 v13, 0")
    A("s_mov_b32 s57, %d" % WS_EP)
    A("s_mov_b64 exec, 1")
    A(f"buffer_store_dwordx2 v[20:21], v13, {SWS}, s57 offen")
    A("s_mov_b64 exec, -1")
    A("s_branch L_fin")

    LBL("L_fallback")
    pf = Path(out)
    A("s_waitcnt lgkmcnt(0)")
    A("s_mov_b32 s46, 0")
    LBL("L_fb_loop")
    qtask_srd()
    q_loads(pf)
    A("s_waitcnt vmcnt(0)")
    q_compute(pf)
    A("s_waitcnt lgkmcnt(0)")
    A("s_barrier")
    A("s_cmp_lg_u32 s3, 0")
    A("s_cbranch_scc1 L_fb_next")
    q_publish(pf, "x")
    A("s_waitcnt vmcnt(0)")
    LBL("L_fb_next")
    A("s_barrier")
    A("s_add_u32 s46, s46, 1")
    A("s_cmp_lt_u32 s46, 16")
    A("s_cbranch_scc1 L_fb_loop")
    A("s_cmp_lg_u32 s3, 1")
    A("s_cbranch_scc1 L_fb_done")
    q_poll_load(pf)
    A("s_waitcnt vmcnt(0)")
    q_finish(pf)
    LBL("L_fb_done")
    A("s_waitcnt lgkmcnt(0)")
    A("s_mov_b32 s78, 1")
    A("s_barrier")
    for jj in range(4):
        A(f"ds_read_b128 v[{16+4*jj}:{19+4*jj}], v14 offset:{64*jj}")
    A("s_branch L_qk")

    LBL("L_fin")
    if dbgst:
        A("s_cmp_lg_u32 s3, 1")
        A("s_cbranch_scc1 L_end")
        A("s_cmp_ge_u32 s53, 9")
        A("s_cbranch_scc1 L_end")
        A("s_waitcnt vmcnt(0)")
        stamp(3)
        A("s_mov_b32 s84, s16")
        A("s_mov_b32 s85, s17")
        A("s_mov_b32 s86, 256")
        A("s_mov_b32 s87, 0x20000")
        A("s_waitcnt lgkmcnt(0)")
        A("s_not_b32 s57, s66")
        A("v_mov_b32 v12, 0")
        A("s_mov_b64 exec, 1")
        for k, r in enumerate(("s57", "s66", "s100", "s68", "s70", f"s{sreg(4)}", f"s{sreg(5)}", f"s{sreg(6)}", f"s{sreg(7)}", f"s{sreg(8)}", f"s{sreg(9)}")):
            A(f"v_mov_b32 v16, {r}")
            A(f"buffer_atomic_umax v16, v12, s[84:87], 0 offen offset:{4*k} sc1")
            A("s_nop 1")
        A("s_branch L_end")
    if stamps:
        A("s_waitcnt vmcnt(0)")
        stamp(3)
        A("s_lshl_b32 s57, s2, 3")
        A("s_add_u32 s57, s57, s3")
        A("s_lshl_b32 s57, s57, 4")
        A("s_add_u32 s84, s18, 0x%x" % WS_STAMP)
        A("s_addc_u32 s85, s19, 0")
        A("s_mov_b32 s86, 0x400000")
        A("s_mov_b32 s87, 0x20000")
        A("s_waitcnt lgkmcnt(0)")
        A("v_mov_b32 v8, s66")
        A("v_mov_b32 v9, s67")
        A("v_mov_b32 v10, s100")
        A("v_mov_b32 v11, s101")
        for i in (1, 2, 4, 5, 6, 7, 8, 9):
            A(f"s_sub_u32 s{sreg(i)}, s{sreg(i)}, s66")
        A("s_getreg_b32 s58, hwreg(HW_REG_XCC_ID)")
        A("v_mov_b32 v16, s58")
        A("v_mov_b32 v17, s68")
        A("v_mov_b32 v18, s70")
        A("v_mov_b32 v19, s64")
        for k, i in enumerate((4, 5, 6, 7)):
            A(f"v_mov_b32 v{20+k}, s{sreg(i)}")
        for k, i in enumerate((8, 9)):
            A(f"v_mov_b32 v{24+k}, s{sreg(i)}")
        A("v_mov_b32 v26, 0")
        A("v_mov_b32 v27, 0")
        A("v_mov_b32 v12, s57")
        A("s_mov_b32 s58, 0x100000")
        A("s_mov_b32 s59, 0x200000")
        A("s_mov_b32 s57, 0x300000")
        A("s_mov_b64 exec, 1")
        A("buffer_store_dwordx4 v[8:11], v12, s[84:87], 0 offen")
        A("buffer_store_dwordx4 v[16:19], v12, s[84:87], s58 offen")
        A("buffer_store_dwordx4 v[20:23], v12, s[84:87], s59 offen")
        A("buffer_store_dwordx4 v[24:27], v12, s[84:87], s57 offen")
    LBL("L_end")
    A("s_endpgm")
    out.append('.section .rodata,"a"')
    out.append(".p2align 6")
    out.append(f".amdhsa_kernel {KNAME}")
    out.append("  .amdhsa_next_free_vgpr 256")
    out.append("  .amdhsa_next_free_sgpr 102")
    out.append("  .amdhsa_accum_offset 256")
    out.append("  .amdhsa_group_segment_fixed_size 0")
    out.append("  .amdhsa_kernarg_size 64")
    out.append("  .amdhsa_user_sgpr_count 2")
    out.append("  .amdhsa_user_sgpr_kernarg_segment_ptr 1")
    out.append("  .amdhsa_system_sgpr_workgroup_id_x 1")
    out.append("  .amdhsa_float_denorm_mode_32 3")
    out.append(".end_amdhsa_kernel")
    return "\n".join(out) + "\n"


if __name__ == "__main__":
    import json
    base = ("nowo", "nowq", "notail")
    V = {
        "k19": dict(wk0=6, wk1=6, wv=6, fsleep=0),
        "k19a": dict(wk0=6, wk1=6, wv=6, fsleep=0, w0add=0, w1add=0),
        "k19b": dict(wk0=6, wk1=6, wv=6, fsleep=0, w0add=0, w1add=0, yprio=1),
        "k19c": dict(wk0=5, wk1=5, wv=5, fsleep=0, w0add=0, w1add=0, yprio=1),
        "k19d": dict(wk0=8, wk1=8, wv=8, fsleep=0, w0add=0, w1add=0, yprio=1),
    }
    for n, c in V.items():
        open(f"bench/{n}_st.s", "w").write(gen(stamps=True, **c))
    open("k19.s", "w").write(gen(**V["k19"]))
    open("k19_dbg.s", "w").write(gen(stamps=True, dbgst=True, **V["k19"]))
    print(" ".join(f"bench/{n}_st.s" for n in V))
    print(json.dumps([f"bench/{n}_st.s" for n in V]))
```

```python
import sys

KNAME = "standalone__sliding_block_cached__sampling_kernel"

KR = 0
WOS = 98304
WQS = 131072
QR = 149504
OP = 131072
PB = 139264
QB = 157696
ST = 158208
FL = 158336
XR = 0
ZT = 158464
LDS_BYTES = 159488

WS_QP = 0
WS_OM = 1 << 20
WS_EP = (1 << 20) + (768 << 10)
WS_PM = 2 << 20
WS_BYTES = 4 << 20
WS_STAMP = 512 << 20

SPIN_MAX = 200000
QSPIN_MAX = 60


class Path:
    def __init__(self, out, q=None):
        self.out = out
        self.q = list(q) if q else []
        self.count = 0

    def a(self, s):
        self.out.append("  " + s)

    def vm(self, s, tag):
        self.a(s)
        self.count += 1
        self.q.append(tag)
        assert len(self.q) <= 63, "too many outstanding vmem ops"

    def wait(self, tag, extra=""):
        idx = max([i for i, t in enumerate(self.q) if t == tag], default=-1)
        if idx < 0:
            if extra:
                self.a(f"s_waitcnt {extra}")
            return
        n = len(self.q) - 1 - idx
        self.a(f"s_waitcnt vmcnt({n}) {extra}".rstrip())
        self.q = self.q[idx + 1:]

    def throttle(self, w):
        if len(self.q) > w:
            self.a(f"s_waitcnt vmcnt({w})")
            self.q = self.q[len(self.q) - w:] if w else []

    def pending(self, tag):
        return tag in self.q


def gen(stamps=False, fast=True, force_fallback=False, wk0=5, wk1=5, wv=5, nslow=8, wkinit=3, qpolls=(10, 13, 16, 19, 22, 26), qpubs=(8, 9, 10, 12),
        w1add=1, w0add=1, fsleep=2, vburst=8, abl=(), qst='', qld=' sc1', xld=' nt', ast='', ald=' sc1',
        bst=' sc1', bld=' sc1', wo_at=12, yprio=0, dbgst=False, tlbwarm=False, topcode=0, codeb=16, vpol=' nt', kpol=' nt'):
    out = []
    A = lambda s: out.append("  " + s)
    LBL = lambda s: out.append(s + ":")
    hdr = """; Fused q-projection + sliding-window GQA decode attention + output projection for gfx950 (MI355X).
; Kernarg (8 pointers): x[16,576] k_cache[16,16,4096,128] v_cache[...] wq[576,4096] wo[4096,576] out[16,576] debug ws
;
;   K: LDS-DMA (xor-swizzled source) -> ds_read_b128 -> registers in MFMA layout, held until q is known
;   q: workgroup (b,hkv) computes 16 columns of q = x*wq for all 16 batches (MFMA, transposing LDS reads); the 16
; Every hand-off word carries a tag derived from an epoch counter kept in d_ws (read at entry, +1, written back by the
"""
    out.extend(hdr.rstrip("\n").split("\n"))
    out.append(f"; @launch grid=(256,1,1) block=(512,1,1) lds={LDS_BYTES}")
    out.append('.amdgcn_target "amdgcn-amd-amdhsa--gfx950"')
    out.append(".text")
    out.append(f".globl {KNAME}")
    out.append(".p2align 8")
    out.append(f".type {KNAME},@function")
    LBL(KNAME)

    SK, SV, SWQ, SX, SWO, SWS, SOUT = "s[20:23]", "s[24:27]", "s[28:31]", "s[32:35]", "s[36:39]", "s[40:43]", "s[48:51]"

    def sreg(i):
        return (66 + 2 * i if i < 3 else 100) if i < 4 else 88 + 2 * (i - 4)

    def stamp(i):
        if stamps:
            A(f"s_memrealtime s[{sreg(i)}:{sreg(i)+1}]")

    A("s_cmp_ge_u32 s2, 256")
    A("s_cbranch_scc1 L_end")
    A("s_load_dwordx16 s[4:19], s[0:1], 0")
    stamp(0)
    if stamps:
        for i in range(4, 10):
            A(f"s_mov_b64 s[{sreg(i)}:{sreg(i)+1}], 0")
        A("s_mov_b32 s64, 0")
    A("v_lshrrev_b32 v2, 6, v0")
    A("v_and_b32 v1, 63, v0")
    A("v_readfirstlane_b32 s3, v2")
    A("v_and_b32 v2, 15, v1")
    A("v_lshrrev_b32 v3, 4, v1")
    A("s_getpc_b64 s[58:59]")
    LBL("L_pc0")
    A("v_lshlrev_b32 v13, 7, v0")
    A("v_min_u32 v13, L_end-L_pc0, v13")
    A("global_load_dword v60, v13, s[58:59]")
    A("v_xor_b32 v13, v2, v3")
    A("v_lshlrev_b32 v13, 4, v13")
    A("v_lshl_or_b32 v4, v3, 8, v13")
    A("s_lshl_b32 s57, s2, 8")
    A("s_add_u32 s57, s57, s3")
    A("s_lshl_b32 s57, s57, 12")
    A("s_add_u32 s57, s57, 0xc0000")
    A("s_mov_b32 s22, 0x39000")
    A("s_mov_b32 s23, 0x20000")
    A("s_mul_i32 s56, s3, 12288")
    A("s_mov_b32 m0, s56")
    A("v_xor_b32 v5, 64, v4")
    A("v_xor_b32 v6, 0x80, v4")
    A("v_xor_b32 v7, 0xc0, v4")

    def issue_k1(p, n, force_m0=False):
        bi, i = n // 4, n % 4
        if i == 0 and bi >= 3:
            p.a("s_waitcnt lgkmcnt(0)")
        if (i == 0 and n) or force_m0:
            p.a(f"s_add_u32 m0, s56, {(bi % 3) * 4096}")
            p.a("s_nop 0")
        so = "0" if bi == 0 else "s54"
        p.vm(f"buffer_load_dwordx4 v{4+i}, {SK}, {so} offen offset:{i*1024}{kpol} lds", f"k{bi}")
        if i == 3:
            p.a("s_add_u32 s54, s54, 0x8000" if bi else "s_mov_b32 s54, 0x8000")

    A("s_waitcnt lgkmcnt(0)")
    A("s_add_u32 s20, s6, s57")
    A("s_addc_u32 s21, s7, 0")
    p0 = Path(out)
    assert wkinit >= 4 and wkinit <= 12
    for n in range(wkinit):
        issue_k1(p0, n)
    A("s_and_b32 s52, s2, 15")
    A("s_lshr_b32 s53, s2, 4")
    A("v_mov_b32 v14, %d" % FL)
    A("v_mov_b32 v16, 0")
    A("v_mov_b32 v17, 0")
    A("v_mov_b32 v18, 0")
    A("v_mov_b32 v19, 0")
    A("s_mov_b64 exec, 1")
    A("ds_write_b128 v14, v[16:19]")
    A("s_mov_b64 exec, -1")
    A("s_waitcnt lgkmcnt(0)")
    A("s_barrier")
    A("s_add_u32 s76, s18, %d" % WS_EP)
    A("s_addc_u32 s77, s19, 0")
    A("s_load_dwordx2 s[44:45], s[76:77], 0")
    A("v_lshrrev_b32 v52, 1, v1")
    A("v_lshlrev_b32 v52, 13, v52")
    A("v_and_b32 v14, 1, v1")
    A("v_lshl_add_u32 v52, v14, 4, v52")
    A("v_mul_u32_u24 v53, 1152, v2")
    A("v_lshl_add_u32 v53, v3, 4, v53")
    A("s_mov_b32 s46, s53")
    A("s_mov_b32 s31, 0x20000")
    A("s_mov_b32 s32, s4")
    A("s_mov_b32 s33, s5")
    A("s_mov_b32 s34, 18432")
    A("s_mov_b32 s35, 0x20000")
    A("s_add_u32 s24, s8, s57")
    A("s_addc_u32 s25, s9, 0")
    A("s_lshl_b32 s76, s3, 18")
    A("s_add_u32 s72, s76, %d" % (16 << 18))
    A("s_lshl_b32 s78, s3, 6")
    A("s_add_u32 s73, s78, 1024")
    A("s_lshl_b32 s75, s3, 10")
    A("s_add_u32 s75, s75, %d" % WQS)
    A("s_add_u32 s74, s75, 16384")
    A("s_mov_b32 s57, %d" % ZT)
    A("s_cmp_lt_u32 s3, 2")
    A("s_cselect_b32 s72, s72, 0x7ff00000")
    A("s_cselect_b32 s73, s73, 0x7ff00000")
    A("s_cselect_b32 s74, s74, s57")

    def qtask_srd():
        A("s_lshl_b32 s57, s52, 9")
        A("s_lshl_b32 s58, s46, 5")
        A("s_add_u32 s57, s57, s58")
        A("s_sub_u32 s30, %d, s57" % (0 if "nowq" in abl else 4718592))
        if "nowq" in abl:
            A("s_mov_b32 s30, 0")
        A("s_add_u32 s28, s10, s57")
        A("s_addc_u32 s29, s11, 0")

    def q_loads(p):
        p.a("s_mov_b32 m0, s75")
        p.a("s_lshl_b32 s76, s3, 18")
        p.vm(f"buffer_load_dwordx4 v52, {SWQ}, s76 offen nt lds", "wq")
        p.a("s_add_u32 m0, s75, 8192")
        p.a("s_add_u32 s77, s76, %d" % (8 << 18))
        p.vm(f"buffer_load_dwordx4 v52, {SWQ}, s77 offen nt lds", "wq")
        p.a("s_mov_b32 m0, s74")
        p.a("s_lshl_b32 s78, s3, 6")
        p.vm(f"buffer_load_dwordx4 v52, {SWQ}, s72 offen nt lds", "wq")
        p.vm(f"buffer_load_dwordx4 v[32:35], v53, {SX}, s78 offen{xld}", "wq")
        p.vm(f"buffer_load_dwordx4 v[36:39], v53, {SX}, s78 offen offset:512{xld}", "wq")
        p.vm(f"buffer_load_dwordx4 v[40:43], v53, {SX}, s73 offen{xld}", "wq")

    qtask_srd()
    q_loads(p0)
    A("v_lshl_or_b32 v8, v2, 8, v13")
    A("v_add_u32 v8, s56, v8")
    A("v_xor_b32 v9, 64, v8")
    A("v_xor_b32 v10, 0x80, v8")
    A("v_xor_b32 v11, 0xc0, v8")
    A("v_lshlrev_b32 v12, 4, v1")
    A("s_mov_b32 s26, s22")
    A("s_mov_b32 s27, 0x20000")
    A("s_mov_b32 s55, 0")
    A("s_mov_b32 s60, 0x05040100")
    A("s_mov_b32 s61, 0x07060302")
    A("s_mov_b32 s62, 0x3db504f3")
    A("s_mov_b32 s63, 0x3fb8aa3b")
    A("s_getreg_b32 s47, hwreg(HW_REG_XCC_ID)")
    A("s_and_b32 s47, s47, 7")
    A("s_mov_b32 s83, s47")
    A("s_lshl_b32 s58, s52, 8")
    A("s_lshl_b32 s59, s3, 5")
    A("s_add_u32 s58, s58, s59")
    A("s_mul_i32 s58, s58, 1152")
    A("s_lshl_b32 s59, s53, 7")
    A("s_add_u32 s58, s58, s59")
    A("s_cmp_lt_u32 s53, 9")
    A("s_cselect_b32 s38, %d, 0" % (0 if "nowo" in abl else 35840))
    A("s_cselect_b32 s58, s58, 0")
    A("s_mov_b32 s39, 0x20000")
    A("s_add_u32 s36, s12, s58")
    A("s_addc_u32 s37, s13, 0")
    A("v_lshrrev_b32 v14, 3, v1")
    A("v_mul_u32_u24 v14, 1152, v14")
    A("v_and_b32 v13, 7, v1")
    A("v_lshl_add_u32 v14, v13, 4, v14")
    A("s_lshl_b32 s65, s3, 12")
    A("s_add_u32 s65, s65, %d" % WOS)

    def issue_wo1(p, e):
        p.a(f"s_add_u32 m0, s65, {1024*e}")
        p.a(f"s_mov_b32 s57, {8*1152*e}")
        p.vm(f"buffer_load_dwordx4 v14, {SWO}, s57 offen nt lds", "wo")

    A("s_mov_b32 s40, s18")
    A("s_mov_b32 s41, s19")
    A("s_mov_b32 s42, %d" % WS_BYTES)
    A("s_mov_b32 s43, 0x20000")
    A("s_mov_b32 s48, s14")
    A("s_mov_b32 s49, s15")
    A("s_mov_b32 s50, 18432")
    A("s_mov_b32 s51, 0x20000")
    A("v_lshrrev_b32 v54, 2, v2")
    A("v_lshl_add_u32 v54, v3, 3, v54")
    A("v_lshlrev_b32 v54, 5, v54")
    A("v_and_b32 v13, 3, v2")
    A("v_lshl_add_u32 v54, v13, 3, v54")
    A("s_lshl_b32 s59, s3, 10")
    A("s_add_u32 s59, s59, %d" % QR)
    A("v_add_u32 v55, s59, v12")

    def q_compute(p, count=False):
        p.a("v_add_u32 v13, s75, v54")
        p.a("v_add_u32 v15, s74, v54")
        p.a("ds_read_b64_tr_b16 v[96:97], v13")
        p.a("ds_read_b64_tr_b16 v[98:99], v13 offset:128")
        p.a("ds_read_b64_tr_b16 v[100:101], v13 offset:8192")
        p.a("ds_read_b64_tr_b16 v[102:103], v13 offset:8320")
        p.a("ds_read_b64_tr_b16 v[104:105], v15")
        p.a("ds_read_b64_tr_b16 v[106:107], v15 offset:128")
        p.a("s_waitcnt lgkmcnt(4)")
        p.a("v_mfma_f32_16x16x32_bf16 v[48:51], v[96:99], v[32:35], 0")
        p.a("s_waitcnt lgkmcnt(2)")
        p.a("v_mfma_f32_16x16x32_bf16 v[48:51], v[100:103], v[36:39], v[48:51]")
        p.a("s_waitcnt lgkmcnt(0)")
        p.a("v_mfma_f32_16x16x32_bf16 v[48:51], v[104:107], v[40:43], v[48:51]")
        if count:
            p.a("s_add_u32 s44, s44, 1")
            p.a("s_addc_u32 s84, s45, 0")
            p.a("s_mul_i32 s45, s44, 0x9e3779b1")
            p.a("s_xor_b32 s45, s45, s84")
        p.a("v_mov_b32 v13, %d" % FL)
        p.a("v_mov_b32 v16, 1")
        p.a("s_nop 6")
        p.a("ds_write_b128 v55, v[48:51]")
        if count:
            p.a("s_mov_b64 exec, 1")
            p.a("ds_add_u32 v13, v16 offset:12")
            p.a("s_mov_b64 exec, -1")

    if tlbwarm:
        A("s_cmp_lg_u32 s3, 3")
        A("s_cbranch_scc1 L_notlb")
        A("v_mov_b32 v13, 0")
        A("s_mov_b32 s57, %d" % WS_PM)
        A("s_mov_b64 exec, 1")
        A(f"buffer_load_dword v60, v13, {SV}, 0 offen nt")
        A(f"buffer_load_dword v61, v13, {SWO}, 0 offen nt")
        A(f"buffer_load_dword v62, v13, {SWS}, s57 offen nt")
        A(f"buffer_load_dword v63, v13, {SOUT}, 0 offen nt")
        A("s_mov_b64 exec, -1")
        LBL("L_notlb")
    if yprio:
        A("s_cmp_lt_u32 s3, 4")
        A("s_cbranch_scc1 L_noprio")
        A(f"s_setprio {yprio}")
        LBL("L_noprio")
    if "nopub" not in abl:
        A("s_cmp_eq_u32 s3, 0")
        A("s_cbranch_scc1 L_w0")
    if "nopoll" not in abl:
        A("s_cmp_eq_u32 s3, 1")
        A("s_cbranch_scc1 L_w1")
    if "nocode" not in abl:
        A("s_lshl_b32 s57, s53, 3")
        A("s_add_u32 s57, s57, s3")
        A("s_cmp_eq_u32 s57, 2")
        A("s_cbranch_scc1 L_w2")
    q0 = list(p0.q)

    def read_k(p, bi):
        for jj in range(4):
            r = 128 + 16 * bi + 4 * jj
            p.a(f"ds_read_b128 v[{r}:{r+3}], v{8+jj} offset:{(bi % 3) * 4096}")

    def vreg(hb):
        return 64 + 16 * hb

    def issue_v1(p, n):
        hb, i = n // 4, n % 4
        r = vreg(hb) + 4 * i
        p.vm(f"buffer_load_dwordx4 v[{r}:{r+3}], v12, {SV}, s55 offen offset:{i*1024}{vpol}", f"v{hb}")
        if i == 3:
            p.a("s_add_u32 s55, s55, 0x8000")

    def q_publish(p, tag):
        p.a("v_add_u32 v13, %d, v12" % QR)
        for w in range(8):
            p.a(f"ds_read_b128 v[{96+4*w}:{99+4*w}], v13 offset:{1024*w}")
        p.a("s_lshl_b32 s57, s52, 14")
        p.a("s_lshl_b32 s58, s46, 6")
        p.a("s_add_u32 s57, s57, s58")
        p.a("v_lshlrev_b32 v13, 10, v2")
        p.a("v_lshl_add_u32 v13, v3, 4, v13")
        p.a("s_add_u32 s58, s45, s83")
        p.a("v_mov_b32 v17, s44")
        p.a("v_mov_b32 v19, s58")
        p.a("s_waitcnt lgkmcnt(6)")
        for r in range(4):
            p.a(f"v_add_f32 v{96+r}, v{96+r}, v{100+r}")
        p.a("s_waitcnt lgkmcnt(4)")
        for r in range(4):
            p.a(f"v_add_f32 v{104+r}, v{104+r}, v{108+r}")
        p.a("s_waitcnt lgkmcnt(2)")
        for r in range(4):
            p.a(f"v_add_f32 v{112+r}, v{112+r}, v{116+r}")
        for r in range(4):
            p.a(f"v_add_f32 v{96+r}, v{96+r}, v{104+r}")
        p.a("s_waitcnt lgkmcnt(0)")
        for r in range(4):
            p.a(f"v_add_f32 v{120+r}, v{120+r}, v{124+r}")
        for r in range(4):
            p.a(f"v_add_f32 v{112+r}, v{112+r}, v{120+r}")
        for r in range(4):
            p.a(f"v_add_f32 v{96+r}, v{96+r}, v{112+r}")
        p.a("v_cvt_pk_bf16_f32 v16, v96, v97")
        p.a("v_cvt_pk_bf16_f32 v18, v98, v99")
        if tag:
            p.vm(f"buffer_store_dwordx4 v[16:19], v13, {SWS}, s57 offen{qst}", tag)
        else:
            p.a(f"buffer_store_dwordx4 v[16:19], v13, {SWS}, s57 offen{qst}")

    NVPRE = 8

    def kphase(p, wadd=0, polls=(), poll_issue=None, poll_check=None, pubs=(), pub_try=None):
        st = {"read": 0, "poll": 0, "m0": False, "qc": False}

        def service(nissued):
            if not st["qc"] and not p.pending("wq"):
                stamp(4)
                q_compute(p, True)
                st["qc"] = True
            while st["read"] < 8 and 4 * st["read"] + 4 <= nissued and not p.pending(f"k{st['read']}"):
                read_k(p, st["read"])
                st["read"] += 1
        for n in range(wkinit, 32):
            w = (wk0 if n < nslow else wk1) + wadd
            nk = sum(1 for t in p.q if t != "wq")
            if nk >= w:
                p.throttle(w - 1)
            if st["poll"] and n >= st["poll"] + 2:
                k = p.count - st["mark"]
                poll_check(p, st["poll"], k)
                st["poll"] = 0
            service(n)
            if n in pubs:
                if n == max(pubs) and not st["qc"]:
                    p.wait("wq")
                    service(n)
                if st["qc"]:
                    pub_try(p, n)
            if n in polls and not st["poll"] and st["qc"]:
                poll_issue(p, n)
                st["poll"] = n
                st["mark"] = p.count
            if n % 4 == 0 and n // 4 >= 3 and st["read"] <= n // 4 - 3:
                p.wait(f"k{n // 4 - 3}")
                service(n)
            assert n % 4 or n // 4 < 3 or st["read"] > n // 4 - 3
            issue_k1(p, n, force_m0=not st["m0"])
            st["m0"] = True
            if n + 1 == wo_at:
                for e in range(4):
                    p.throttle(w - 1)
                    service(n + 1)
                    issue_wo1(p, e)
                st["m0"] = False
        for n in range(NVPRE):
            p.throttle(wk1 + wadd - 1)
            service(32)
            issue_v1(p, n)
        p.wait("k7")
        service(32)
        assert st["read"] == 8 and st["poll"] == 0
        p.throttle(wk1 - 1)

    LBL("L_gen")
    p = Path(out, q0)
    kphase(p)
    endq = list(p.q)
    p.a("s_branch L_join")

    LBL("L_w0")
    p = Path(out, q0)
    p.a("s_mov_b32 s79, 0")

    def pub_try(p, n, last=False):
        p.a("s_cmp_lg_u32 s79, 0")
        p.a(f"s_cbranch_scc1 L_pu{n}")
        p.a("v_mov_b32 v13, %d" % FL)
        LBL(f"L_pw{n}")
        p.a("ds_read_b32 v16, v13 offset:12")
        p.a("s_waitcnt lgkmcnt(0)")
        p.a("v_readfirstlane_b32 s57, v16")
        p.a("s_cmp_lt_u32 s57, 8")
        p.a(f"s_cbranch_scc1 {'L_pw%d' % n if last else 'L_pu%d' % n}")
        p.a("s_setprio 3")
        q_publish(p, None)
        p.a("s_setprio 0")
        p.a("s_mov_b32 s79, 1")
        stamp(5)
        LBL(f"L_pu{n}")

    lastpub = max(qpubs)
    kphase(p, wadd=w0add, pubs=qpubs, pub_try=lambda pp, n: pub_try(pp, n, n == lastpub))
    assert p.q == endq, (p.q, endq)
    p.a("s_branch L_join")

    LBL("L_w1")
    p = Path(out, q0)

    def q_poll_load(p):
        p.a("s_lshl_b32 s57, s52, 14")
        p.a("s_lshl_b32 s58, s53, 10")
        p.a("s_add_u32 s57, s57, s58")
        p.a(f"buffer_load_dwordx4 v[16:19], v12, {SWS}, s57 offen{qld}")

    def q_check(p):
        p.a("v_subrev_u32 v21, s45, v19")
        p.a("v_xor_b32 v20, s44, v17")
        p.a("v_lshrrev_b32 v22, 4, v21")
        p.a("v_or_b32 v20, v20, v22")
        p.a("v_cmp_ne_u32 vcc, 0, v20")
        p.a("s_nop 1")

    def q_finish(p):
        p.a("v_mov_b32 v17, v18")
        p.a("v_lshlrev_b32 v13, 3, v1")
        p.a("v_add_u32 v13, %d, v13" % QB)
        p.a("ds_write_b64 v13, v[16:17]")

    def q_success(p):
        q_finish(p)
        p.a("v_cmp_ne_u32 vcc, s47, v21")
        p.a("s_nop 1")
        p.a("s_cmp_lg_u64 vcc, 0")
        p.a("s_cselect_b32 s57, 1, 0")
        p.a("v_mov_b32 v56, s57")
        p.a("s_mov_b32 s79, 1")

    def q_flag(p):
        p.a("v_mov_b32 v57, s79")
        p.a("v_mov_b32 v13, %d" % FL)
        p.a("s_waitcnt lgkmcnt(0)")
        p.a("s_mov_b64 exec, 1")
        p.a("ds_write_b64 v13, v[56:57]")
        p.a("s_mov_b64 exec, -1")

    def poll_issue(p, n):
        p.a("s_cmp_lg_u32 s79, 0")
        p.a(f"s_cbranch_scc1 L_pi{n}")
        q_poll_load(p)
        LBL(f"L_pi{n}")

    def poll_check(p, n, k):
        p.a("s_cmp_lg_u32 s79, 0")
        p.a(f"s_cbranch_scc1 L_pc{n}")
        p.a(f"s_waitcnt vmcnt({k})")
        q_check(p)
        if force_fallback:
            p.a(f"s_branch L_pc{n}")
        p.a("s_cmp_lg_u64 vcc, 0")
        p.a(f"s_cbranch_scc1 L_pc{n}")
        q_success(p)
        q_flag(p)
        stamp(6)
        LBL(f"L_pc{n}")

    p.a("s_mov_b32 s79, 0")
    kphase(p, wadd=w1add, polls=qpolls, poll_issue=poll_issue, poll_check=poll_check)
    assert p.q == endq, (p.q, endq)
    if "nopub" in abl:
        p.a("s_branch L_join")
    p.a("s_cmp_lg_u32 s79, 0")
    p.a("s_cbranch_scc1 L_join")
    p.a("s_mov_b32 s64, 0")
    LBL("L_qretry")
    q_poll_load(p)
    p.a("s_waitcnt vmcnt(0)")
    q_check(p)
    if not force_fallback:
        p.a("s_cmp_eq_u64 vcc, 0")
        p.a("s_cbranch_scc1 L_qok")
    p.a("s_add_u32 s64, s64, 1")
    p.a("s_cmp_le_u32 s64, %d" % (QSPIN_MAX if not force_fallback else 1))
    p.a("s_cbranch_scc1 L_qretry")
    p.a("s_mov_b32 s79, 2")
    p.a("v_mov_b32 v56, 1")
    p.a("s_branch L_qflag")
    LBL("L_qok")
    q_success(p)
    LBL("L_qflag")
    q_flag(p)

    LBL("L_join")
    p = Path(out, endq)
    p.a("v_mov_b32 v58, %d" % FL)
    p.a("v_and_b32 v13, 1, v1")
    p.a("v_lshlrev_b32 v13, 8, v13")
    p.a("v_lshl_add_u32 v13, v3, 4, v13")
    p.a("v_add_u32 v14, %d, v13" % QB)
    p.a("s_lshl_b32 s57, s3, 9")
    p.a("s_add_u32 s57, s57, %d" % PB)
    p.a("v_add_u32 v59, s57, v13")
    LBL("L_qwait")
    p.a("ds_read_b64 v[56:57], v58")
    for jj in range(4):
        p.a(f"ds_read_b128 v[{16+4*jj}:{19+4*jj}], v14 offset:{64*jj}")
    p.a("s_waitcnt lgkmcnt(4)")
    p.a("v_readfirstlane_b32 s78, v56")
    p.a("v_readfirstlane_b32 s79, v57")
    if not ({"noq", "nopub", "nopoll"} & set(abl)):
        p.a("s_cmp_eq_u32 s79, 0")
        p.a("s_cbranch_scc1 L_qwait")
        p.a("s_cmp_eq_u32 s79, 2")
        p.a("s_cbranch_scc1 L_fallback")
    LBL("L_qk")
    stamp(1)
    for n in range(8, 8 + vburst):
        issue_v1(p, n)
    p.a("v_mov_b32 v15, v59")
    p.a("s_lshl_b32 s57, s3, 9")
    p.a("s_add_u32 s57, s57, %d" % PB)
    p.a("v_and_b32 v13, 1, v3")
    p.a("v_lshlrev_b32 v13, 8, v13")
    p.a("v_and_b32 v14, 3, v2")
    p.a("v_lshl_add_u32 v13, v14, 4, v13")
    p.a("v_lshrrev_b32 v14, 2, v2")
    p.a("v_lshl_add_u32 v13, v14, 1, v13")
    p.a("v_add_u32 v13, s57, v13")
    p.a("v_and_b32 v14, 1, v3")
    p.a("v_cmp_eq_u32 s[76:77], 1, v14")
    p.a("s_waitcnt lgkmcnt(0)")
    for bi in range(8):
        for jj in range(4):
            c = "0" if jj == 0 else f"v[{32+4*bi}:{35+4*bi}]"
            r = 128 + 16 * bi + 4 * jj
            p.a(f"v_mfma_f32_16x16x32_bf16 v[{32+4*bi}:{35+4*bi}], v[{16+4*jj}:{19+4*jj}], v[{r}:{r+3}], {c}")
    for n in range(8 + vburst, 16):
        issue_v1(p, n)
    p.a("s_nop 7")
    for bi in range(8):
        d = 32 + 4 * bi
        p.a(f"v_cvt_pk_bf16_f32 v{d+2}, v{d}, v{d+1}")
    for bi in range(8):
        d = 32 + 4 * bi
        p.a(f"v_lshlrev_b32 v{d}, 16, v{d+2}")
        p.a(f"v_and_b32 v{d+1}, 0xffff0000, v{d+2}")
    for bi in range(8):
        d = 32 + 4 * bi
        p.a(f"v_mul_f32 v{d}, s62, v{d}")
        p.a(f"v_mul_f32 v{d+1}, s62, v{d+1}")
    for bi in range(8):
        d = 32 + 4 * bi
        p.a(f"v_cvt_pk_bf16_f32 v{d+2}, v{d}, v{d+1}")
    for bi in range(8):
        d = 32 + 4 * bi
        p.a(f"v_lshlrev_b32 v{d}, 16, v{d+2}")
        p.a(f"v_and_b32 v{d+1}, 0xffff0000, v{d+2}")
    for h, m in ((0, 16), (1, 18)):
        p.a(f"v_max3_f32 v{m}, v{32+h}, v{36+h}, v{40+h}")
        p.a(f"v_max3_f32 v{m+1}, v{44+h}, v{48+h}, v{52+h}")
    for h, m in ((0, 16), (1, 18)):
        p.a(f"v_max3_f32 v{m}, v{m}, v{56+h}, v{60+h}")
    for h, m in ((0, 16), (1, 18)):
        p.a(f"v_max_f32 v{m}, v{m}, v{m+1}")
    for sh in (8, 4, 2, 1):
        p.a("s_nop 0")
        for m in (16, 18):
            p.a(f"v_max_f32_dpp v{m}, v{m}, v{m} row_ror:{sh} row_mask:0xf bank_mask:0xf")
    for bi in range(8):
        d = 32 + 4 * bi
        p.a(f"v_sub_f32 v{d}, v{d}, v16")
        p.a(f"v_sub_f32 v{d+1}, v{d+1}, v18")
    for bi in range(8):
        d = 32 + 4 * bi
        p.a(f"v_mul_f32 v{d}, s63, v{d}")
        p.a(f"v_mul_f32 v{d+1}, s63, v{d+1}")
    for bi in range(8):
        d = 32 + 4 * bi
        p.a(f"v_exp_f32 v{d}, v{d}")
        p.a(f"v_exp_f32 v{d+1}, v{d+1}")
    for bi in range(8):
        d = 32 + 4 * bi
        p.a(f"v_cndmask_b32 v{d+2}, v{d}, v{d+1}, s[76:77]")
    for bi in range(8):
        d = 32 + 4 * bi
        p.a(f"v_cvt_pk_bf16_f32 v{d+2}, v{d+2}, v{d+2}")
    for bi in range(8):
        d = 32 + 4 * bi
        p.a(f"ds_write_b16 v13, v{d+2} offset:{(bi >> 1)*64 + (bi & 1)*8}")
    for h, l in ((0, 17), (1, 19)):
        p.a(f"v_add_f32 v{l}, v{32+h}, v{36+h}")
        p.a(f"v_add_f32 v{20+h}, v{40+h}, v{44+h}")
        p.a(f"v_add_f32 v{22+h}, v{48+h}, v{52+h}")
        p.a(f"v_add_f32 v{24+h}, v{56+h}, v{60+h}")
    for h, l in ((0, 17), (1, 19)):
        p.a(f"v_add_f32 v{l}, v{l}, v{20+h}")
        p.a(f"v_add_f32 v{22+h}, v{22+h}, v{24+h}")
    for h, l in ((0, 17), (1, 19)):
        p.a(f"v_add_f32 v{l}, v{l}, v{22+h}")
    for sh in (8, 4, 2, 1):
        p.a("s_nop 0")
        for l in (17, 19):
            p.a(f"v_add_f32_dpp v{l}, v{l}, v{l} row_ror:{sh} row_mask:0xf bank_mask:0xf")
    p.a("s_lshl_b32 s57, s3, 4")
    p.a("s_add_u32 s57, s57, %d" % ST)
    p.a("v_mov_b32 v14, s57")
    p.a("v_mov_b32 v240, v16")
    p.a("v_mov_b32 v241, v18")
    p.a("v_mov_b32 v246, %d" % FL)
    p.a("v_mov_b32 v247, 1")
    p.a("s_mov_b64 exec, 1")
    p.a("ds_write_b128 v14, v[16:19]")
    p.a("ds_add_u32 v246, v247 offset:8")
    p.a("s_mov_b64 exec, -1")
    p.a("s_waitcnt lgkmcnt(0)")
    for mm in range(4):
        p.a(f"ds_read_b128 v[{16+4*mm}:{19+4*mm}], v15 offset:{64*mm}")

    def pv(p, mm):
        def src(i, dw):
            return vreg(2 * mm + (i >> 2)) + 4 * (i & 3) + dw
        tbuf = [192, 196, 200, 204]

        def perms(j):
            tb = tbuf[j % 4]
            for d in range(4):
                p.a(f"v_perm_b32 v{tb+d}, v{src(2*d+1, j >> 1)}, v{src(2*d, j >> 1)}, {'s61' if j & 1 else 's60'}")

        def mf(j):
            tb = tbuf[j % 4]
            c = "0" if mm == 0 else f"v[{32+4*j}:{35+4*j}]"
            p.a(f"v_mfma_f32_16x16x32_bf16 v[{32+4*j}:{35+4*j}], v[{16+4*mm}:{19+4*mm}], v[{tb}:{tb+3}], {c}")
        perms(0)
        for j in range(8):
            if j + 1 < 8:
                perms(j + 1)
            else:
                p.a("s_nop 1")
            mf(j)

    done = 0
    first = True
    for n in range(16, 32):
        p.throttle(wv - 1)
        while done < 3 and not p.pending(f"v{2*done}") and not p.pending(f"v{2*done+1}") and 8 * done + 8 <= n:
            if first:
                p.a("s_waitcnt lgkmcnt(0)")
                first = False
            pv(p, done)
            done += 1
        issue_v1(p, n)
    while done < 3:
        p.wait(f"v{2*done+1}")
        if first:
            p.a("s_waitcnt lgkmcnt(0)")
            first = False
        pv(p, done)
        done += 1
    p.a("v_mov_b32 v14, %d" % ST)
    LBL("L_stwait")
    p.a("ds_read_b32 v247, v246 offset:8")
    for w in range(8):
        p.a(f"ds_read_b128 v[{208+4*w}:{211+4*w}], v14 offset:{16*w}")
    p.a("s_waitcnt lgkmcnt(8)")
    p.a("v_readfirstlane_b32 s57, v247")
    p.a("s_cmp_lt_u32 s57, 8")
    p.a("s_cbranch_scc1 L_stwait")
    p.a("s_waitcnt lgkmcnt(0)")
    for h in range(2):
        M = 244 + h
        p.a(f"v_max3_f32 v{M}, v{208+2*h}, v{212+2*h}, v{216+2*h}")
        p.a(f"v_max3_f32 v{M}, v{M}, v{220+2*h}, v{224+2*h}")
        p.a(f"v_max3_f32 v{M}, v{M}, v{228+2*h}, v{232+2*h}")
        p.a(f"v_max_f32 v{M}, v{M}, v{236+2*h}")
    for h in range(2):
        M = 244 + h
        for w in range(8):
            p.a(f"v_sub_f32 v{208+4*w+2*h}, v{208+4*w+2*h}, v{M}")
        p.a(f"v_sub_f32 v{240+h}, v{240+h}, v{M}")
    for h in range(2):
        for w in range(8):
            p.a(f"v_mul_f32 v{208+4*w+2*h}, s63, v{208+4*w+2*h}")
        p.a(f"v_mul_f32 v{240+h}, s63, v{240+h}")
    for h in range(2):
        for w in range(8):
            p.a(f"v_exp_f32 v{208+4*w+2*h}, v{208+4*w+2*h}")
        p.a(f"v_exp_f32 v{240+h}, v{240+h}")
    for h in range(2):
        p.a(f"v_mul_f32 v{242+h}, v{208+2*h}, v{209+2*h}")
    for w in range(1, 8):
        for h in range(2):
            p.a(f"v_fmac_f32 v{242+h}, v{208+4*w+2*h}, v{209+4*w+2*h}")
    for h in range(2):
        p.a(f"v_rcp_f32 v{242+h}, v{242+h}")
    p.a("s_nop 0")
    for h in range(2):
        p.a(f"v_mul_f32 v{242+h}, v{242+h}, v{240+h}")
    p.a("s_lshl_b32 s57, s3, 10")
    p.a("s_add_u32 s57, s57, %d" % OP)
    p.a("v_lshlrev_b32 v14, 5, v2")
    p.a("v_add_u32 v14, s57, v14")
    p.wait("v7")
    stamp(2)
    pv(p, 3)
    p.a("s_nop 4")
    for j in range(8):
        if j == 6:
            p.a("s_nop 3")
        for h in range(2):
            p.a(f"v_mul_f32 v{64+8*h+j}, v{242+h}, v{32+4*j+h}")
    p.a("s_mov_b64 exec, 0xffff")
    for h in range(2):
        for half in range(2):
            p.a(f"ds_write_b128 v14, v[{64+8*h+4*half}:{67+8*h+4*half}] offset:{512*h+16*half}")
    p.a("s_mov_b64 exec, -1")
    p.a("s_waitcnt lgkmcnt(0)")
    p.a("s_barrier")
    stamp(7)
    if "notail" in abl:
        p.a("s_branch L_fin")
    p.a("s_cmp_eq_u32 s3, 0")
    p.a("s_cbranch_scc1 L_reduce")
    p.a("s_cmp_ge_u32 s53, 9")
    p.a("s_cbranch_scc1 L_fin")
    p.a("s_cmp_ge_u32 s3, 4")
    p.a("s_cbranch_scc1 L_stageA")
    p.a("s_cmp_eq_u32 s3, 1")
    p.a("s_cbranch_scc1 L_final")
    p.a("s_branch L_fin")

    LBL("L_reduce")
    A("s_setprio 3")
    A("v_add_u32 v14, %d, v12" % OP)
    for w in range(8):
        A(f"ds_read_b128 v[{64+4*w}:{67+4*w}], v14 offset:{1024*w}")
    A("s_lshl_b32 s57, s52, 14")
    A("s_lshl_b32 s58, s53, 4")
    A("s_add_u32 s57, s57, s58")
    A("s_add_u32 s57, s57, %d" % WS_OM)
    A("v_lshrrev_b32 v13, 3, v1")
    A("v_lshlrev_b32 v13, 11, v13")
    A("v_and_b32 v15, 1, v1")
    A("v_lshl_add_u32 v13, v15, 10, v13")
    A("v_bfe_u32 v15, v1, 1, 2")
    A("v_lshl_add_u32 v13, v15, 8, v13")
    A("v_mov_b32 v17, s44")
    A("v_mov_b32 v19, s45")
    A("s_waitcnt lgkmcnt(6)")
    for r in range(4):
        A(f"v_add_f32 v{64+r}, v{64+r}, v{68+r}")
    A("s_waitcnt lgkmcnt(4)")
    for r in range(4):
        A(f"v_add_f32 v{72+r}, v{72+r}, v{76+r}")
    A("s_waitcnt lgkmcnt(2)")
    for r in range(4):
        A(f"v_add_f32 v{80+r}, v{80+r}, v{84+r}")
    for r in range(4):
        A(f"v_add_f32 v{64+r}, v{64+r}, v{72+r}")
    A("s_waitcnt lgkmcnt(0)")
    for r in range(4):
        A(f"v_add_f32 v{88+r}, v{88+r}, v{92+r}")
    for r in range(4):
        A(f"v_add_f32 v{80+r}, v{80+r}, v{88+r}")
    for r in range(4):
        A(f"v_add_f32 v{64+r}, v{64+r}, v{80+r}")
    A("v_cvt_pk_bf16_f32 v16, v64, v65")
    A("v_cvt_pk_bf16_f32 v18, v66, v67")
    stamp(8)
    if fast:
        A("s_cmp_eq_u32 s78, 0")
        A("s_cbranch_scc1 L_red_fast")
    A(f"buffer_store_dwordx4 v[16:19], v13, {SWS}, s57 offen sc1")
    A("s_branch L_fin")
    if fast:
        LBL("L_red_fast")
        A(f"buffer_store_dwordx4 v[16:19], v13, {SWS}, s57 offen{ast}")
        A("s_branch L_fin")

    def tagpieces():
        A("s_mul_i32 s82, s44, 0x85ebca77")
        A("s_lshr_b32 s80, s45, 20")
        A("s_bfe_u32 s81, s45, 0xc0008")
        A("s_add_u32 s82, s82, s84")
        A("s_bfe_u32 s83, s82, 0xc0008")
        A("s_lshr_b32 s82, s82, 20")

    LBL("L_stageA")
    A("s_sub_u32 s59, s3, 4")
    A("s_lshl_b32 s57, s52, 14")
    A("s_lshl_b32 s58, s59, 12")
    A("s_add_u32 s57, s57, s58")
    A("s_add_u32 s57, s57, %d" % WS_OM)

    def sa_loads():
        for ks in range(2):
            for h in range(2):
                r = 64 + 8 * ks + 4 * h
                A(f"buffer_load_dwordx4 v[{r}:{r+3}], v12, {SWS}, s57 offen offset:{2048*ks+1024*h}{ald}")
    sa_loads()
    A("v_lshrrev_b32 v14, 2, v2")
    A("v_lshl_add_u32 v14, v3, 3, v14")
    A("v_lshlrev_b32 v14, 7, v14")
    A("v_and_b32 v13, 3, v2")
    A("v_lshl_add_u32 v14, v13, 3, v14")
    A("s_lshl_b32 s58, s59, 13")
    A("s_add_u32 s58, s58, %d" % WOS)
    A("v_add_u32 v14, s58, v14")
    for t in range(4):
        for ks in range(2):
            for h in range(2):
                r = 128 + 8 * t + 4 * ks + 2 * h
                A(f"ds_read_b64_tr_b16 v[{r}:{r+1}], v14 offset:{4096*ks+512*h+32*t}")
    A("s_lshl_b32 s58, s53, 2")
    A("s_add_u32 s58, s58, s59")
    A("s_lshl_b32 s58, s58, 4")
    A("s_add_u32 s58, s58, s52")
    A("s_lshl_b32 s58, s58, 10")
    A("s_add_u32 s58, s58, %d" % WS_PM)
    A("s_mul_i32 s80, s59, 4608")
    A("v_mul_u32_u24 v20, 272, v3")
    A("v_lshl_add_u32 v20, v2, 4, v20")
    A("v_add_u32 v20, s80, v20")
    A("v_mul_u32_u24 v21, 272, v2")
    A("v_lshl_add_u32 v21, v3, 4, v21")
    A("s_lshl_b32 s80, s59, 6")
    A("v_add_u32 v21, s80, v21")
    tagpieces()
    A("v_mov_b32 v22, 0xfff")
    A("s_mov_b32 s64, 0")
    LBL("L_sa_poll")
    for gi in range(4):
        r = 64 + 4 * gi
        A(f"s_waitcnt vmcnt({3-gi})")
        A(f"v_xor_b32 v17, s44, v{r+1}")
        A(f"v_xor_b32 v18, s45, v{r+3}")
        if gi == 0:
            A("v_or_b32 v16, v17, v18")
        else:
            A("v_or3_b32 v16, v16, v17, v18")
        A(f"v_mov_b32 v{160+2*gi}, v{r}")
        A(f"v_mov_b32 v{161+2*gi}, v{r+2}")
    A("v_cmp_ne_u32 vcc, 0, v16")
    A("s_nop 1")
    A("s_cmp_eq_u64 vcc, 0")
    A("s_cbranch_scc1 L_sa_go")
    A("s_add_u32 s64, s64, 1")
    A("s_cmp_gt_u32 s64, %d" % SPIN_MAX)
    A("s_cbranch_scc1 L_sa_go")
    sa_loads()
    A("s_branch L_sa_poll")
    LBL("L_sa_go")
    stamp(8)
    A("s_waitcnt lgkmcnt(0)")
    for ks in range(2):
        for t in range(4):
            r = 128 + 8 * t + 4 * ks
            c = "0" if ks == 0 else f"v[{32+4*t}:{35+4*t}]"
            A(f"v_mfma_f32_16x16x32_bf16 v[{32+4*t}:{35+4*t}], v[{r}:{r+3}], v[{160+4*ks}:{163+4*ks}], {c}")
    A("s_nop 4")
    for t in range(4):
        if t:
            A("s_nop 0")
        A(f"ds_write_b128 v20, v[{32+4*t}:{35+4*t}] offset:{1088*t}")
    A("s_waitcnt lgkmcnt(0)")
    A("s_barrier")
    for w in range(4):
        A(f"ds_read_b128 v[{32+4*w}:{35+4*w}], v21 offset:{4608*w}")
    A("s_waitcnt lgkmcnt(2)")
    for r in range(4):
        A(f"v_add_f32 v{32+r}, v{32+r}, v{36+r}")
    A("s_waitcnt lgkmcnt(0)")
    for r in range(4):
        A(f"v_add_f32 v{40+r}, v{40+r}, v{44+r}")
    for r in range(4):
        A(f"v_add_f32 v{32+r}, v{32+r}, v{40+r}")
    for r in range(4):
        A(f"v_bfi_b32 v{32+r}, v22, s{80+r}, v{32+r}")
    A(f"buffer_store_dwordx4 v[32:35], v12, {SWS}, s58 offen{bst}")
    stamp(9)
    A("s_branch L_fin")

    LBL("L_final")
    A("s_mul_i32 s57, s52, 9")
    A("s_add_u32 s57, s57, s53")
    A("s_lshr_b32 s58, s57, 2")
    A("s_lshl_b32 s58, s58, 14")
    A("s_and_b32 s59, s57, 3")
    A("s_lshl_b32 s59, s59, 8")
    A("s_add_u32 s72, s58, s59")
    A("s_add_u32 s72, s72, %d" % WS_PM)
    A("s_add_u32 s73, s72, 4096")
    A("s_add_u32 s74, s72, 8192")
    A("s_add_u32 s75, s72, 12288")
    A("v_lshlrev_b32 v14, 10, v3")
    A("v_lshl_add_u32 v14, v2, 4, v14")
    A("s_and_b32 s58, s57, 15")
    A("s_mul_i32 s58, s58, 1152")
    A("s_lshr_b32 s59, s57, 4")
    A("s_lshl_b32 s59, s59, 7")
    A("s_add_u32 s58, s58, s59")
    A("v_lshlrev_b32 v15, 3, v2")
    tagpieces()
    A("s_mov_b32 s64, 0")
    A("s_mov_b32 s79, 0xf")
    A("s_barrier")
    LBL("L_fi_poll")
    for j in range(4):
        r = 64 + 4 * j
        A(f"s_bitcmp0_b32 s79, {j}")
        A(f"s_cbranch_scc1 L_fl{j}")
        A(f"buffer_load_dwordx4 v[{r}:{r+3}], v14, {SWS}, s{72+j} offen{bld}")
        LBL(f"L_fl{j}")
    A("s_waitcnt vmcnt(0)")
    for j in range(4):
        r = 64 + 4 * j
        A(f"s_bitcmp0_b32 s79, {j}")
        A(f"s_cbranch_scc1 L_fc{j}")
        A(f"v_xor_b32 v16, s80, v{r}")
        A(f"v_xor_b32 v17, s81, v{r+1}")
        A(f"v_xor_b32 v18, s82, v{r+2}")
        A(f"v_xor_b32 v19, s83, v{r+3}")
        A("v_or3_b32 v20, v16, v17, v18")
        A("v_or_b32 v20, v20, v19")
        A("v_and_b32 v20, 0xfff, v20")
        A("v_cmp_ne_u32 vcc, 0, v20")
        A("s_nop 1")
        A("s_cmp_lg_u64 vcc, 0")
        A(f"s_cbranch_scc1 L_fc{j}")
        for d in range(4):
            A(f"v_mov_b32 v{r+d}, v{16+d}")
        A(f"s_bitset0_b32 s79, {j}")
        LBL(f"L_fc{j}")
    A("s_cmp_eq_u32 s79, 0")
    A("s_cbranch_scc1 L_fi_go")
    if fsleep:
        A(f"s_sleep {fsleep}")
    A("s_add_u32 s64, s64, 1")
    A("s_cmp_le_u32 s64, %d" % SPIN_MAX)
    A("s_cbranch_scc1 L_fi_poll")
    LBL("L_fi_go")
    stamp(9)
    for d in range(4):
        A(f"v_add_f32 v{64+d}, v{64+d}, v{68+d}")
        A(f"v_add_f32 v{72+d}, v{72+d}, v{76+d}")
    for d in range(4):
        A(f"v_add_f32 v{20+d}, v{64+d}, v{72+d}")
    for d in range(4):
        A(f"v_add_f32 v{24+d}, v{64+d}, v{72+d}")
    for d in range(4):
        A(f"v_permlane32_swap_b32 v{20+d}, v{24+d}")
    A("s_nop 0")
    for d in range(4):
        A(f"v_add_f32 v{28+d}, v{20+d}, v{24+d}")
    for d in range(4):
        A(f"v_add_f32 v{20+d}, v{20+d}, v{24+d}")
    for d in range(4):
        A(f"v_permlane16_swap_b32 v{28+d}, v{20+d}")
    A("s_nop 0")
    for d in range(4):
        A(f"v_add_f32 v{20+d}, v{20+d}, v{28+d}")
    A("v_cvt_pk_bf16_f32 v16, v20, v21")
    A("v_cvt_pk_bf16_f32 v17, v22, v23")
    A("s_mov_b64 exec, 0xffff")
    A(f"buffer_store_dwordx2 v[16:17], v15, {SOUT}, s58 offen")
    A("s_mov_b64 exec, -1")
    A("s_cmp_lg_u32 s2, 0")
    A("s_cbranch_scc1 L_fin")
    A("v_mov_b32 v20, s44")
    A("v_mov_b32 v21, s84")
    A("v_mov_b32 v13, 0")
    A("s_mov_b32 s57, %d" % WS_EP)
    A("s_mov_b64 exec, 1")
    A(f"buffer_store_dwordx2 v[20:21], v13, {SWS}, s57 offen")
    A("s_mov_b64 exec, -1")
    A("s_branch L_fin")

    LBL("L_fallback")
    pf = Path(out)
    A("s_waitcnt lgkmcnt(0)")
    A("s_mov_b32 s46, 0")
    A("s_mov_b32 s83, 15")
    LBL("L_fb_loop")
    qtask_srd()
    q_loads(pf)
    A("s_waitcnt vmcnt(0)")
    q_compute(pf)
    A("s_waitcnt lgkmcnt(0)")
    A("s_barrier")
    A("s_cmp_lg_u32 s3, 0")
    A("s_cbranch_scc1 L_fb_next")
    q_publish(pf, "x")
    A("s_waitcnt vmcnt(0)")
    LBL("L_fb_next")
    A("s_barrier")
    A("s_add_u32 s46, s46, 1")
    A("s_cmp_lt_u32 s46, 16")
    A("s_cbranch_scc1 L_fb_loop")
    A("s_cmp_lg_u32 s3, 1")
    A("s_cbranch_scc1 L_fb_done")
    q_poll_load(pf)
    A("s_waitcnt vmcnt(0)")
    q_finish(pf)
    LBL("L_fb_done")
    A("s_waitcnt lgkmcnt(0)")
    A("s_mov_b32 s78, 1")
    A("s_barrier")
    for jj in range(4):
        A(f"ds_read_b128 v[{16+4*jj}:{19+4*jj}], v14 offset:{64*jj}")
    A("s_branch L_qk")

    LBL("L_fin")
    if dbgst:
        A("s_cmp_lg_u32 s3, 1")
        A("s_cbranch_scc1 L_end")
        A("s_cmp_ge_u32 s53, 9")
        A("s_cbranch_scc1 L_end")
        A("s_waitcnt vmcnt(0)")
        stamp(3)
        A("s_mov_b32 s84, s16")
        A("s_mov_b32 s85, s17")
        A("s_mov_b32 s86, 256")
        A("s_mov_b32 s87, 0x20000")
        A("s_waitcnt lgkmcnt(0)")
        A("s_not_b32 s57, s66")
        A("v_mov_b32 v12, 0")
        A("s_mov_b64 exec, 1")
        for k, r in enumerate(("s57", "s66", "s100", "s68", "s70", f"s{sreg(4)}", f"s{sreg(5)}", f"s{sreg(6)}", f"s{sreg(7)}", f"s{sreg(8)}", f"s{sreg(9)}")):
            A(f"v_mov_b32 v16, {r}")
            A(f"buffer_atomic_umax v16, v12, s[84:87], 0 offen offset:{4*k} sc1")
            A("s_nop 1")
        A("s_branch L_end")
    if stamps:
        A("s_waitcnt vmcnt(0)")
        stamp(3)
        A("s_lshl_b32 s57, s2, 3")
        A("s_add_u32 s57, s57, s3")
        A("s_lshl_b32 s57, s57, 4")
        A("s_add_u32 s84, s18, 0x%x" % WS_STAMP)
        A("s_addc_u32 s85, s19, 0")
        A("s_mov_b32 s86, 0x400000")
        A("s_mov_b32 s87, 0x20000")
        A("s_waitcnt lgkmcnt(0)")
        A("v_mov_b32 v8, s66")
        A("v_mov_b32 v9, s67")
        A("v_mov_b32 v10, s100")
        A("v_mov_b32 v11, s101")
        for i in (1, 2, 4, 5, 6, 7, 8, 9):
            A(f"s_sub_u32 s{sreg(i)}, s{sreg(i)}, s66")
        A("s_getreg_b32 s58, hwreg(HW_REG_XCC_ID)")
        A("v_mov_b32 v16, s58")
        A("v_mov_b32 v17, s68")
        A("v_mov_b32 v18, s70")
        A("v_mov_b32 v19, s64")
        for k, i in enumerate((4, 5, 6, 7)):
            A(f"v_mov_b32 v{20+k}, s{sreg(i)}")
        for k, i in enumerate((8, 9)):
            A(f"v_mov_b32 v{24+k}, s{sreg(i)}")
        A("v_mov_b32 v26, 0")
        A("v_mov_b32 v27, 0")
        A("v_mov_b32 v12, s57")
        A("s_mov_b32 s58, 0x100000")
        A("s_mov_b32 s59, 0x200000")
        A("s_mov_b32 s57, 0x300000")
        A("s_mov_b64 exec, 1")
        A("buffer_store_dwordx4 v[8:11], v12, s[84:87], 0 offen")
        A("buffer_store_dwordx4 v[16:19], v12, s[84:87], s58 offen")
        A("buffer_store_dwordx4 v[20:23], v12, s[84:87], s59 offen")
        A("buffer_store_dwordx4 v[24:27], v12, s[84:87], s57 offen")
    LBL("L_end")
    A("s_endpgm")
    out.append('.section .rodata,"a"')
    out.append(".p2align 6")
    out.append(f".amdhsa_kernel {KNAME}")
    out.append("  .amdhsa_next_free_vgpr 256")
    out.append("  .amdhsa_next_free_sgpr 102")
    out.append("  .amdhsa_accum_offset 256")
    out.append("  .amdhsa_group_segment_fixed_size 0")
    out.append("  .amdhsa_kernarg_size 64")
    out.append("  .amdhsa_user_sgpr_count 2")
    out.append("  .amdhsa_user_sgpr_kernarg_segment_ptr 1")
    out.append("  .amdhsa_system_sgpr_workgroup_id_x 1")
    out.append("  .amdhsa_float_denorm_mode_32 3")
    out.append(".end_amdhsa_kernel")
    return "\n".join(out) + "\n"


if __name__ == "__main__":
    C = dict(topcode=8, abl=("nocode",), fsleep=0, wkinit=4, wk0=6, wk1=6, wv=6)
    open("standalone__sliding_block_cached__sampling.s", "w").write(gen(**C))
    open("final.s", "w").write(gen(**C))
```

```python
import sys

KNAME = "standalone__sliding_block_cached__sampling_kernel"

KR = 0
WOS = 98304
WQS = 131072
QR = 149504
OP = 131072
PB = 139264
QB = 157696
ST = 158208
FL = 158336
XR = 0
ZT = 158464
LDS_BYTES = 159488

WS_QP = 0
WS_OM = 1 << 20
WS_EP = (1 << 20) + (768 << 10)
WS_PM = 2 << 20
WS_BYTES = 4 << 20
WS_STAMP = 512 << 20

SPIN_MAX = 200000
QSPIN_MAX = 60


class Path:
    def __init__(self, out, q=None):
        self.out = out
        self.q = list(q) if q else []
        self.count = 0

    def a(self, s):
        self.out.append("  " + s)

    def vm(self, s, tag):
        self.a(s)
        self.count += 1
        self.q.append(tag)
        assert len(self.q) <= 63, "too many outstanding vmem ops"

    def wait(self, tag, extra=""):
        idx = max([i for i, t in enumerate(self.q) if t == tag], default=-1)
        if idx < 0:
            if extra:
                self.a(f"s_waitcnt {extra}")
            return
        n = len(self.q) - 1 - idx
        self.a(f"s_waitcnt vmcnt({n}) {extra}".rstrip())
        self.q = self.q[idx + 1:]

    def throttle(self, w):
        if len(self.q) > w:
            self.a(f"s_waitcnt vmcnt({w})")
            self.q = self.q[len(self.q) - w:] if w else []

    def pending(self, tag):
        return tag in self.q


def gen(stamps=False, fast=True, force_fallback=False, wk0=5, wk1=5, wv=5, nslow=8, wkinit=3, qpolls=(10, 13, 16, 19, 22, 26), qpubs=(8, 9, 10, 12),
        w1add=1, w0add=1, fsleep=2, vburst=8, abl=(), qst='', qld=' sc1', xld=' nt', ast='', ald=' sc1',
        bst=' sc1', bld=' sc1', wo_at=12, yprio=0, dbgst=False, tlbwarm=False, topcode=0, codeb=16, vpol=' nt', kpol=' nt'):
    out = []
    A = lambda s: out.append("  " + s)
    LBL = lambda s: out.append(s + ":")
    hdr = """; Fused q-projection + sliding-window GQA decode attention + output projection for gfx950 (MI355X).
; Kernarg (8 pointers): x[16,576] k_cache[16,16,4096,128] v_cache[...] wq[576,4096] wo[4096,576] out[16,576] debug ws
;
;   K: LDS-DMA (xor-swizzled source) -> ds_read_b128 -> registers in MFMA layout, held until q is known
;   q: workgroup (b,hkv) computes 16 columns of q = x*wq for all 16 batches (MFMA, transposing LDS reads); the 16
; Every hand-off word carries a tag derived from an epoch counter kept in d_ws (read at entry, +1, written back by the
"""
    out.extend(hdr.rstrip("\n").split("\n"))
    out.append(f"; @launch grid=(256,1,1) block=(512,1,1) lds={LDS_BYTES}")
    out.append('.amdgcn_target "amdgcn-amd-amdhsa--gfx950"')
    out.append(".text")
    out.append(f".globl {KNAME}")
    out.append(".p2align 8")
    out.append(f".type {KNAME},@function")
    LBL(KNAME)

    SK, SV, SWQ, SX, SWO, SWS, SOUT = "s[20:23]", "s[24:27]", "s[28:31]", "s[32:35]", "s[36:39]", "s[40:43]", "s[48:51]"

    def sreg(i):
        return (66 + 2 * i if i < 3 else 100) if i < 4 else 88 + 2 * (i - 4)

    def stamp(i):
        if stamps:
            A(f"s_memrealtime s[{sreg(i)}:{sreg(i)+1}]")

    A("s_cmp_ge_u32 s2, 256")
    A("s_cbranch_scc1 L_end")
    A("s_load_dwordx16 s[4:19], s[0:1], 0")
    stamp(0)
    if stamps:
        for i in range(4, 10):
            A(f"s_mov_b64 s[{sreg(i)}:{sreg(i)+1}], 0")
        A("s_mov_b32 s64, 0")
    A("v_lshrrev_b32 v2, 6, v0")
    A("v_and_b32 v1, 63, v0")
    A("v_readfirstlane_b32 s3, v2")
    A("v_and_b32 v2, 15, v1")
    A("v_lshrrev_b32 v3, 4, v1")
    A("s_getpc_b64 s[58:59]")
    LBL("L_pc0")
    A("v_lshlrev_b32 v13, 7, v0")
    A("v_min_u32 v13, L_end-L_pc0, v13")
    A("global_load_dword v60, v13, s[58:59]")
    A("v_xor_b32 v13, v2, v3")
    A("v_lshlrev_b32 v13, 4, v13")
    A("v_lshl_or_b32 v4, v3, 8, v13")
    A("s_lshl_b32 s57, s2, 8")
    A("s_add_u32 s57, s57, s3")
    A("s_lshl_b32 s57, s57, 12")
    A("s_add_u32 s57, s57, 0xc0000")
    A("s_mov_b32 s22, 0x39000")
    A("s_mov_b32 s23, 0x20000")
    A("s_mul_i32 s56, s3, 12288")
    A("s_mov_b32 m0, s56")
    A("v_xor_b32 v5, 64, v4")
    A("v_xor_b32 v6, 0x80, v4")
    A("v_xor_b32 v7, 0xc0, v4")

    def issue_k1(p, n, force_m0=False):
        bi, i = n // 4, n % 4
        if i == 0 and bi >= 3:
            p.a("s_waitcnt lgkmcnt(0)")
        if (i == 0 and n) or force_m0:
            p.a(f"s_add_u32 m0, s56, {(bi % 3) * 4096}")
            p.a("s_nop 0")
        so = "0" if bi == 0 else "s54"
        p.vm(f"buffer_load_dwordx4 v{4+i}, {SK}, {so} offen offset:{i*1024}{kpol} lds", f"k{bi}")
        if i == 3:
            p.a("s_add_u32 s54, s54, 0x8000" if bi else "s_mov_b32 s54, 0x8000")

    A("s_waitcnt lgkmcnt(0)")
    A("s_add_u32 s20, s6, s57")
    A("s_addc_u32 s21, s7, 0")
    p0 = Path(out)
    assert wkinit >= 4 and wkinit <= 12
    for n in range(wkinit):
        issue_k1(p0, n)
    A("s_and_b32 s52, s2, 15")
    A("s_lshr_b32 s53, s2, 4")
    A("v_mov_b32 v14, %d" % FL)
    A("v_mov_b32 v16, 0")
    A("v_mov_b32 v17, 0")
    A("v_mov_b32 v18, 0")
    A("v_mov_b32 v19, 0")
    A("s_mov_b64 exec, 1")
    A("ds_write_b128 v14, v[16:19]")
    A("s_mov_b64 exec, -1")
    A("s_waitcnt lgkmcnt(0)")
    A("s_barrier")
    A("s_add_u32 s76, s18, %d" % WS_EP)
    A("s_addc_u32 s77, s19, 0")
    A("s_load_dwordx2 s[44:45], s[76:77], 0")
    A("v_lshrrev_b32 v52, 1, v1")
    A("v_lshlrev_b32 v52, 13, v52")
    A("v_and_b32 v14, 1, v1")
    A("v_lshl_add_u32 v52, v14, 4, v52")
    A("v_mul_u32_u24 v53, 1152, v2")
    A("v_lshl_add_u32 v53, v3, 4, v53")
    A("s_mov_b32 s46, s53")
    A("s_mov_b32 s31, 0x20000")
    A("s_mov_b32 s32, s4")
    A("s_mov_b32 s33, s5")
    A("s_mov_b32 s34, 18432")
    A("s_mov_b32 s35, 0x20000")
    A("s_add_u32 s24, s8, s57")
    A("s_addc_u32 s25, s9, 0")
    A("s_lshl_b32 s76, s3, 18")
    A("s_add_u32 s72, s76, %d" % (16 << 18))
    A("s_lshl_b32 s78, s3, 6")
    A("s_add_u32 s73, s78, 1024")
    A("s_lshl_b32 s75, s3, 10")
    A("s_add_u32 s75, s75, %d" % WQS)
    A("s_add_u32 s74, s75, 16384")
    A("s_mov_b32 s57, %d" % ZT)
    A("s_cmp_lt_u32 s3, 2")
    A("s_cselect_b32 s72, s72, 0x7ff00000")
    A("s_cselect_b32 s73, s73, 0x7ff00000")
    A("s_cselect_b32 s74, s74, s57")

    def qtask_srd():
        A("s_lshl_b32 s57, s52, 9")
        A("s_lshl_b32 s58, s46, 5")
        A("s_add_u32 s57, s57, s58")
        A("s_sub_u32 s30, %d, s57" % (0 if "nowq" in abl else 4718592))
        if "nowq" in abl:
            A("s_mov_b32 s30, 0")
        A("s_add_u32 s28, s10, s57")
        A("s_addc_u32 s29, s11, 0")

    def q_loads(p):
        p.a("s_mov_b32 m0, s75")
        p.a("s_lshl_b32 s76, s3, 18")
        p.vm(f"buffer_load_dwordx4 v52, {SWQ}, s76 offen nt lds", "wq")
        p.a("s_add_u32 m0, s75, 8192")
        p.a("s_add_u32 s77, s76, %d" % (8 << 18))
        p.vm(f"buffer_load_dwordx4 v52, {SWQ}, s77 offen nt lds", "wq")
        p.a("s_mov_b32 m0, s74")
        p.a("s_lshl_b32 s78, s3, 6")
        p.vm(f"buffer_load_dwordx4 v52, {SWQ}, s72 offen nt lds", "wq")
        p.vm(f"buffer_load_dwordx4 v[32:35], v53, {SX}, s78 offen{xld}", "wq")
        p.vm(f"buffer_load_dwordx4 v[36:39], v53, {SX}, s78 offen offset:512{xld}", "wq")
        p.vm(f"buffer_load_dwordx4 v[40:43], v53, {SX}, s73 offen{xld}", "wq")

    qtask_srd()
    q_loads(p0)
    A("v_lshl_or_b32 v8, v2, 8, v13")
    A("v_add_u32 v8, s56, v8")
    A("v_xor_b32 v9, 64, v8")
    A("v_xor_b32 v10, 0x80, v8")
    A("v_xor_b32 v11, 0xc0, v8")
    A("v_lshlrev_b32 v12, 4, v1")
    A("s_mov_b32 s26, s22")
    A("s_mov_b32 s27, 0x20000")
    A("s_mov_b32 s55, 0")
    A("s_mov_b32 s60, 0x05040100")
    A("s_mov_b32 s61, 0x07060302")
    A("s_mov_b32 s62, 0x3db504f3")
    A("s_mov_b32 s63, 0x3fb8aa3b")
    A("s_getreg_b32 s47, hwreg(HW_REG_XCC_ID)")
    A("s_and_b32 s47, s47, 7")
    A("s_mov_b32 s83, s47")
    A("s_lshl_b32 s58, s52, 8")
    A("s_lshl_b32 s59, s3, 5")
    A("s_add_u32 s58, s58, s59")
    A("s_mul_i32 s58, s58, 1152")
    A("s_lshl_b32 s59, s53, 7")
    A("s_add_u32 s58, s58, s59")
    A("s_cmp_lt_u32 s53, 9")
    A("s_cselect_b32 s38, %d, 0" % (0 if "nowo" in abl else 35840))
    A("s_cselect_b32 s58, s58, 0")
    A("s_mov_b32 s39, 0x20000")
    A("s_add_u32 s36, s12, s58")
    A("s_addc_u32 s37, s13, 0")
    A("v_lshrrev_b32 v14, 3, v1")
    A("v_mul_u32_u24 v14, 1152, v14")
    A("v_and_b32 v13, 7, v1")
    A("v_lshl_add_u32 v14, v13, 4, v14")
    A("s_lshl_b32 s65, s3, 12")
    A("s_add_u32 s65, s65, %d" % WOS)

    def issue_wo1(p, e):
        p.a(f"s_add_u32 m0, s65, {1024*e}")
        p.a(f"s_mov_b32 s57, {8*1152*e}")
        p.vm(f"buffer_load_dwordx4 v14, {SWO}, s57 offen nt lds", "wo")

    A("s_mov_b32 s40, s18")
    A("s_mov_b32 s41, s19")
    A("s_mov_b32 s42, %d" % WS_BYTES)
    A("s_mov_b32 s43, 0x20000")
    A("s_mov_b32 s48, s14")
    A("s_mov_b32 s49, s15")
    A("s_mov_b32 s50, 18432")
    A("s_mov_b32 s51, 0x20000")
    A("v_lshrrev_b32 v54, 2, v2")
    A("v_lshl_add_u32 v54, v3, 3, v54")
    A("v_lshlrev_b32 v54, 5, v54")
    A("v_and_b32 v13, 3, v2")
    A("v_lshl_add_u32 v54, v13, 3, v54")
    A("s_lshl_b32 s59, s3, 10")
    A("s_add_u32 s59, s59, %d" % QR)
    A("v_add_u32 v55, s59, v12")

    def q_compute(p, count=False):
        p.a("v_add_u32 v13, s75, v54")
        p.a("v_add_u32 v15, s74, v54")
        p.a("ds_read_b64_tr_b16 v[96:97], v13")
        p.a("ds_read_b64_tr_b16 v[98:99], v13 offset:128")
        p.a("ds_read_b64_tr_b16 v[100:101], v13 offset:8192")
        p.a("ds_read_b64_tr_b16 v[102:103], v13 offset:8320")
        p.a("ds_read_b64_tr_b16 v[104:105], v15")
        p.a("ds_read_b64_tr_b16 v[106:107], v15 offset:128")
        p.a("s_waitcnt lgkmcnt(4)")
        p.a("v_mfma_f32_16x16x32_bf16 v[48:51], v[96:99], v[32:35], 0")
        p.a("s_waitcnt lgkmcnt(2)")
        p.a("v_mfma_f32_16x16x32_bf16 v[48:51], v[100:103], v[36:39], v[48:51]")
        p.a("s_waitcnt lgkmcnt(0)")
        p.a("s_cmp_ge_u32 s3, 2")
        p.a("s_cbranch_scc1 3f")
        p.a("v_mfma_f32_16x16x32_bf16 v[48:51], v[104:107], v[40:43], v[48:51]")
        out.append("3:")
        if count:
            p.a("s_add_u32 s44, s44, 1")
            p.a("s_addc_u32 s84, s45, 0")
            p.a("s_mul_i32 s45, s44, 0x9e3779b1")
            p.a("s_xor_b32 s45, s45, s84")
        p.a("v_mov_b32 v13, %d" % FL)
        p.a("v_mov_b32 v16, 1")
        p.a("s_nop 6")
        p.a("ds_write_b128 v55, v[48:51]")
        if count:
            p.a("s_mov_b64 exec, 1")
            p.a("ds_add_u32 v13, v16 offset:12")
            p.a("s_mov_b64 exec, -1")

    if tlbwarm:
        A("s_cmp_lg_u32 s3, 3")
        A("s_cbranch_scc1 L_notlb")
        A("v_mov_b32 v13, 0")
        A("s_mov_b32 s57, %d" % WS_PM)
        A("s_mov_b64 exec, 1")
        A(f"buffer_load_dword v60, v13, {SV}, 0 offen nt")
        A(f"buffer_load_dword v61, v13, {SWO}, 0 offen nt")
        A(f"buffer_load_dword v62, v13, {SWS}, s57 offen nt")
        A(f"buffer_load_dword v63, v13, {SOUT}, 0 offen nt")
        A("s_mov_b64 exec, -1")
        LBL("L_notlb")
    if yprio:
        A("s_cmp_lt_u32 s3, 4")
        A("s_cbranch_scc1 L_noprio")
        A(f"s_setprio {yprio}")
        LBL("L_noprio")
    if "nopub" not in abl:
        A("s_cmp_eq_u32 s3, 0")
        A("s_cbranch_scc1 L_w0")
    if "nopoll" not in abl:
        A("s_cmp_eq_u32 s3, 1")
        A("s_cbranch_scc1 L_w1")
    if "nocode" not in abl:
        A("s_lshl_b32 s57, s53, 3")
        A("s_add_u32 s57, s57, s3")
        A("s_cmp_eq_u32 s57, 2")
        A("s_cbranch_scc1 L_w2")
    q0 = list(p0.q)

    def read_k(p, bi):
        for jj in range(4):
            r = 128 + 16 * bi + 4 * jj
            p.a(f"ds_read_b128 v[{r}:{r+3}], v{8+jj} offset:{(bi % 3) * 4096}")

    def vreg(hb):
        return 64 + 16 * hb

    def issue_v1(p, n):
        hb, i = n // 4, n % 4
        r = vreg(hb) + 4 * i
        p.vm(f"buffer_load_dwordx4 v[{r}:{r+3}], v12, {SV}, s55 offen offset:{i*1024}{vpol}", f"v{hb}")
        if i == 3:
            p.a("s_add_u32 s55, s55, 0x8000")

    def q_publish(p, tag):
        p.a("v_add_u32 v13, %d, v12" % QR)
        for w in range(8):
            p.a(f"ds_read_b128 v[{96+4*w}:{99+4*w}], v13 offset:{1024*w}")
        p.a("s_lshl_b32 s57, s52, 14")
        p.a("s_lshl_b32 s58, s46, 6")
        p.a("s_add_u32 s57, s57, s58")
        p.a("v_lshlrev_b32 v13, 10, v2")
        p.a("v_lshl_add_u32 v13, v3, 4, v13")
        p.a("s_add_u32 s58, s45, s83")
        p.a("v_mov_b32 v17, s44")
        p.a("v_mov_b32 v19, s58")
        p.a("s_waitcnt lgkmcnt(6)")
        for r in range(4):
            p.a(f"v_add_f32 v{96+r}, v{96+r}, v{100+r}")
        p.a("s_waitcnt lgkmcnt(4)")
        for r in range(4):
            p.a(f"v_add_f32 v{104+r}, v{104+r}, v{108+r}")
        p.a("s_waitcnt lgkmcnt(2)")
        for r in range(4):
            p.a(f"v_add_f32 v{112+r}, v{112+r}, v{116+r}")
        for r in range(4):
            p.a(f"v_add_f32 v{96+r}, v{96+r}, v{104+r}")
        p.a("s_waitcnt lgkmcnt(0)")
        for r in range(4):
            p.a(f"v_add_f32 v{120+r}, v{120+r}, v{124+r}")
        for r in range(4):
            p.a(f"v_add_f32 v{112+r}, v{112+r}, v{120+r}")
        for r in range(4):
            p.a(f"v_add_f32 v{96+r}, v{96+r}, v{112+r}")
        p.a("v_cvt_pk_bf16_f32 v16, v96, v97")
        p.a("v_cvt_pk_bf16_f32 v18, v98, v99")
        if tag:
            p.vm(f"buffer_store_dwordx4 v[16:19], v13, {SWS}, s57 offen{qst}", tag)
        else:
            p.a(f"buffer_store_dwordx4 v[16:19], v13, {SWS}, s57 offen{qst}")

    NVPRE = 8

    def kphase(p, wadd=0, polls=(), poll_issue=None, poll_check=None, pubs=(), pub_try=None):
        st = {"read": 0, "poll": 0, "m0": False, "qc": False}

        def service(nissued):
            if not st["qc"] and not p.pending("wq"):
                stamp(4)
                q_compute(p, True)
                st["qc"] = True
            while st["read"] < 8 and 4 * st["read"] + 4 <= nissued and not p.pending(f"k{st['read']}"):
                read_k(p, st["read"])
                st["read"] += 1
        for n in range(wkinit, 32):
            w = (wk0 if n < nslow else wk1) + wadd
            nk = sum(1 for t in p.q if t != "wq")
            if nk >= w:
                p.throttle(w - 1)
            if st["poll"] and n >= st["poll"] + 2:
                k = p.count - st["mark"]
                poll_check(p, st["poll"], k)
                st["poll"] = 0
            service(n)
            if n in pubs:
                if n == max(pubs) and not st["qc"]:
                    p.wait("wq")
                    service(n)
                if st["qc"]:
                    pub_try(p, n)
            if n in polls and not st["poll"] and st["qc"]:
                poll_issue(p, n)
                st["poll"] = n
                st["mark"] = p.count
            if n % 4 == 0 and n // 4 >= 3 and st["read"] <= n // 4 - 3:
                p.wait(f"k{n // 4 - 3}")
                service(n)
            assert n % 4 or n // 4 < 3 or st["read"] > n // 4 - 3
            issue_k1(p, n, force_m0=not st["m0"])
            st["m0"] = True
            if n + 1 == wo_at:
                for e in range(4):
                    p.throttle(w - 1)
                    service(n + 1)
                    issue_wo1(p, e)
                st["m0"] = False
        for n in range(NVPRE):
            p.throttle(wk1 + wadd - 1)
            service(32)
            issue_v1(p, n)
        p.wait("k7")
        service(32)
        assert st["read"] == 8 and st["poll"] == 0
        p.throttle(wk1 - 1)

    LBL("L_gen")
    p = Path(out, q0)
    kphase(p)
    endq = list(p.q)
    p.a("s_branch L_join")

    LBL("L_w0")
    p = Path(out, q0)
    p.a("s_mov_b32 s79, 0")

    def pub_try(p, n, last=False):
        p.a("s_cmp_lg_u32 s79, 0")
        p.a(f"s_cbranch_scc1 L_pu{n}")
        p.a("v_mov_b32 v13, %d" % FL)
        LBL(f"L_pw{n}")
        p.a("ds_read_b32 v16, v13 offset:12")
        p.a("s_waitcnt lgkmcnt(0)")
        p.a("v_readfirstlane_b32 s57, v16")
        p.a("s_cmp_lt_u32 s57, 8")
        p.a(f"s_cbranch_scc1 {'L_pw%d' % n if last else 'L_pu%d' % n}")
        p.a("s_setprio 3")
        q_publish(p, None)
        p.a("s_setprio 0")
        p.a("s_mov_b32 s79, 1")
        stamp(5)
        LBL(f"L_pu{n}")

    lastpub = max(qpubs)
    kphase(p, wadd=w0add, pubs=qpubs, pub_try=lambda pp, n: pub_try(pp, n, n == lastpub))
    assert p.q == endq, (p.q, endq)
    p.a("s_branch L_join")

    LBL("L_w1")
    p = Path(out, q0)

    def q_poll_load(p):
        p.a("s_lshl_b32 s57, s52, 14")
        p.a("s_lshl_b32 s58, s53, 10")
        p.a("s_add_u32 s57, s57, s58")
        p.a(f"buffer_load_dwordx4 v[16:19], v12, {SWS}, s57 offen{qld}")

    def q_check(p):
        p.a("v_subrev_u32 v21, s45, v19")
        p.a("v_xor_b32 v20, s44, v17")
        p.a("v_lshrrev_b32 v22, 4, v21")
        p.a("v_or_b32 v20, v20, v22")
        p.a("v_cmp_ne_u32 vcc, 0, v20")
        p.a("s_nop 1")

    def q_finish(p):
        p.a("v_mov_b32 v17, v18")
        p.a("v_lshlrev_b32 v13, 3, v1")
        p.a("v_add_u32 v13, %d, v13" % QB)
        p.a("ds_write_b64 v13, v[16:17]")

    def q_success(p):
        q_finish(p)
        p.a("v_cmp_ne_u32 vcc, s47, v21")
        p.a("s_nop 1")
        p.a("s_cmp_lg_u64 vcc, 0")
        p.a("s_cselect_b32 s57, 1, 0")
        p.a("v_mov_b32 v56, s57")
        p.a("s_mov_b32 s79, 1")

    def q_flag(p):
        p.a("v_mov_b32 v57, s79")
        p.a("v_mov_b32 v13, %d" % FL)
        p.a("s_waitcnt lgkmcnt(0)")
        p.a("s_mov_b64 exec, 1")
        p.a("ds_write_b64 v13, v[56:57]")
        p.a("s_mov_b64 exec, -1")

    def poll_issue(p, n):
        p.a("s_cmp_lg_u32 s79, 0")
        p.a(f"s_cbranch_scc1 L_pi{n}")
        q_poll_load(p)
        LBL(f"L_pi{n}")

    def poll_check(p, n, k):
        p.a("s_cmp_lg_u32 s79, 0")
        p.a(f"s_cbranch_scc1 L_pc{n}")
        p.a(f"s_waitcnt vmcnt({k})")
        q_check(p)
        if force_fallback:
            p.a(f"s_branch L_pc{n}")
        p.a("s_cmp_lg_u64 vcc, 0")
        p.a(f"s_cbranch_scc1 L_pc{n}")
        q_success(p)
        q_flag(p)
        stamp(6)
        LBL(f"L_pc{n}")

    p.a("s_mov_b32 s79, 0")
    kphase(p, wadd=w1add, polls=qpolls, poll_issue=poll_issue, poll_check=poll_check)
    assert p.q == endq, (p.q, endq)
    if "nopub" in abl:
        p.a("s_branch L_join")
    p.a("s_cmp_lg_u32 s79, 0")
    p.a("s_cbranch_scc1 L_join")
    p.a("s_mov_b32 s64, 0")
    LBL("L_qretry")
    q_poll_load(p)
    p.a("s_waitcnt vmcnt(0)")
    q_check(p)
    if not force_fallback:
        p.a("s_cmp_eq_u64 vcc, 0")
        p.a("s_cbranch_scc1 L_qok")
    p.a("s_add_u32 s64, s64, 1")
    p.a("s_cmp_le_u32 s64, %d" % (QSPIN_MAX if not force_fallback else 1))
    p.a("s_cbranch_scc1 L_qretry")
    p.a("s_mov_b32 s79, 2")
    p.a("v_mov_b32 v56, 1")
    p.a("s_branch L_qflag")
    LBL("L_qok")
    q_success(p)
    LBL("L_qflag")
    q_flag(p)

    LBL("L_join")
    p = Path(out, endq)
    p.a("v_mov_b32 v58, %d" % FL)
    p.a("v_and_b32 v13, 1, v1")
    p.a("v_lshlrev_b32 v13, 8, v13")
    p.a("v_lshl_add_u32 v13, v3, 4, v13")
    p.a("v_add_u32 v14, %d, v13" % QB)
    p.a("s_lshl_b32 s57, s3, 9")
    p.a("s_add_u32 s57, s57, %d" % PB)
    p.a("v_add_u32 v59, s57, v13")
    LBL("L_qwait")
    p.a("ds_read_b64 v[56:57], v58")
    for jj in range(4):
        p.a(f"ds_read_b128 v[{16+4*jj}:{19+4*jj}], v14 offset:{64*jj}")
    p.a("s_waitcnt lgkmcnt(4)")
    p.a("v_readfirstlane_b32 s78, v56")
    p.a("v_readfirstlane_b32 s79, v57")
    if not ({"noq", "nopub", "nopoll"} & set(abl)):
        p.a("s_cmp_eq_u32 s79, 0")
        p.a("s_cbranch_scc1 L_qwait")
        p.a("s_cmp_eq_u32 s79, 2")
        p.a("s_cbranch_scc1 L_fallback")
    LBL("L_qk")
    stamp(1)
    for n in range(8, 8 + vburst):
        issue_v1(p, n)
    p.a("v_mov_b32 v15, v59")
    p.a("s_lshl_b32 s57, s3, 9")
    p.a("s_add_u32 s57, s57, %d" % PB)
    p.a("v_and_b32 v13, 1, v3")
    p.a("v_lshlrev_b32 v13, 8, v13")
    p.a("v_and_b32 v14, 3, v2")
    p.a("v_lshl_add_u32 v13, v14, 4, v13")
    p.a("v_lshrrev_b32 v14, 2, v2")
    p.a("v_lshl_add_u32 v13, v14, 1, v13")
    p.a("v_add_u32 v13, s57, v13")
    p.a("v_and_b32 v14, 1, v3")
    p.a("v_cmp_eq_u32 s[76:77], 1, v14")
    p.a("s_waitcnt lgkmcnt(0)")
    for bi in range(8):
        for jj in range(4):
            c = "0" if jj == 0 else f"v[{32+4*bi}:{35+4*bi}]"
            r = 128 + 16 * bi + 4 * jj
            p.a(f"v_mfma_f32_16x16x32_bf16 v[{32+4*bi}:{35+4*bi}], v[{16+4*jj}:{19+4*jj}], v[{r}:{r+3}], {c}")
    for n in range(8 + vburst, 16):
        issue_v1(p, n)
    p.a("s_nop 7")
    for bi in range(8):
        d = 32 + 4 * bi
        p.a(f"v_cvt_pk_bf16_f32 v{d+2}, v{d}, v{d+1}")
    for bi in range(8):
        d = 32 + 4 * bi
        p.a(f"v_lshlrev_b32 v{d}, 16, v{d+2}")
        p.a(f"v_and_b32 v{d+1}, 0xffff0000, v{d+2}")
    for bi in range(8):
        d = 32 + 4 * bi
        p.a(f"v_mul_f32 v{d}, s62, v{d}")
        p.a(f"v_mul_f32 v{d+1}, s62, v{d+1}")
    for bi in range(8):
        d = 32 + 4 * bi
        p.a(f"v_cvt_pk_bf16_f32 v{d+2}, v{d}, v{d+1}")
    for bi in range(8):
        d = 32 + 4 * bi
        p.a(f"v_lshlrev_b32 v{d}, 16, v{d+2}")
        p.a(f"v_and_b32 v{d+1}, 0xffff0000, v{d+2}")
    for h, m in ((0, 16), (1, 18)):
        p.a(f"v_max3_f32 v{m}, v{32+h}, v{36+h}, v{40+h}")
        p.a(f"v_max3_f32 v{m+1}, v{44+h}, v{48+h}, v{52+h}")
    for h, m in ((0, 16), (1, 18)):
        p.a(f"v_max3_f32 v{m}, v{m}, v{56+h}, v{60+h}")
    for h, m in ((0, 16), (1, 18)):
        p.a(f"v_max_f32 v{m}, v{m}, v{m+1}")
    for sh in (8, 4, 2, 1):
        p.a("s_nop 0")
        for m in (16, 18):
            p.a(f"v_max_f32_dpp v{m}, v{m}, v{m} row_ror:{sh} row_mask:0xf bank_mask:0xf")
    for bi in range(8):
        d = 32 + 4 * bi
        p.a(f"v_sub_f32 v{d}, v{d}, v16")
        p.a(f"v_sub_f32 v{d+1}, v{d+1}, v18")
    for bi in range(8):
        d = 32 + 4 * bi
        p.a(f"v_mul_f32 v{d}, s63, v{d}")
        p.a(f"v_mul_f32 v{d+1}, s63, v{d+1}")
    for bi in range(8):
        d = 32 + 4 * bi
        p.a(f"v_exp_f32 v{d}, v{d}")
        p.a(f"v_exp_f32 v{d+1}, v{d+1}")
    for bi in range(8):
        d = 32 + 4 * bi
        p.a(f"v_cndmask_b32 v{d+2}, v{d}, v{d+1}, s[76:77]")
    for bi in range(8):
        d = 32 + 4 * bi
        p.a(f"v_cvt_pk_bf16_f32 v{d+2}, v{d+2}, v{d+2}")
    for bi in range(8):
        d = 32 + 4 * bi
        p.a(f"ds_write_b16 v13, v{d+2} offset:{(bi >> 1)*64 + (bi & 1)*8}")
    for h, l in ((0, 17), (1, 19)):
        p.a(f"v_add_f32 v{l}, v{32+h}, v{36+h}")
        p.a(f"v_add_f32 v{20+h}, v{40+h}, v{44+h}")
        p.a(f"v_add_f32 v{22+h}, v{48+h}, v{52+h}")
        p.a(f"v_add_f32 v{24+h}, v{56+h}, v{60+h}")
    for h, l in ((0, 17), (1, 19)):
        p.a(f"v_add_f32 v{l}, v{l}, v{20+h}")
        p.a(f"v_add_f32 v{22+h}, v{22+h}, v{24+h}")
    for h, l in ((0, 17), (1, 19)):
        p.a(f"v_add_f32 v{l}, v{l}, v{22+h}")
    for sh in (8, 4, 2, 1):
        p.a("s_nop 0")
        for l in (17, 19):
            p.a(f"v_add_f32_dpp v{l}, v{l}, v{l} row_ror:{sh} row_mask:0xf bank_mask:0xf")
    p.a("s_lshl_b32 s57, s3, 4")
    p.a("s_add_u32 s57, s57, %d" % ST)
    p.a("v_mov_b32 v14, s57")
    p.a("v_mov_b32 v240, v16")
    p.a("v_mov_b32 v241, v18")
    p.a("v_mov_b32 v246, %d" % FL)
    p.a("v_mov_b32 v247, 1")
    p.a("s_mov_b64 exec, 1")
    p.a("ds_write_b128 v14, v[16:19]")
    p.a("ds_add_u32 v246, v247 offset:8")
    p.a("s_mov_b64 exec, -1")
    p.a("s_waitcnt lgkmcnt(0)")
    for mm in range(4):
        p.a(f"ds_read_b128 v[{16+4*mm}:{19+4*mm}], v15 offset:{64*mm}")

    def pv(p, mm):
        def src(i, dw):
            return vreg(2 * mm + (i >> 2)) + 4 * (i & 3) + dw
        tbuf = [192, 196, 200, 204]

        def perms(j):
            tb = tbuf[j % 4]
            for d in range(4):
                p.a(f"v_perm_b32 v{tb+d}, v{src(2*d+1, j >> 1)}, v{src(2*d, j >> 1)}, {'s61' if j & 1 else 's60'}")

        def mf(j):
            tb = tbuf[j % 4]
            c = "0" if mm == 0 else f"v[{32+4*j}:{35+4*j}]"
            p.a(f"v_mfma_f32_16x16x32_bf16 v[{32+4*j}:{35+4*j}], v[{16+4*mm}:{19+4*mm}], v[{tb}:{tb+3}], {c}")
        perms(0)
        for j in range(8):
            if j + 1 < 8:
                perms(j + 1)
            else:
                p.a("s_nop 1")
            mf(j)

    done = 0
    first = True
    for n in range(16, 32):
        p.throttle(wv - 1)
        while done < 3 and not p.pending(f"v{2*done}") and not p.pending(f"v{2*done+1}") and 8 * done + 8 <= n:
            if first:
                p.a("s_waitcnt lgkmcnt(0)")
                first = False
            pv(p, done)
            done += 1
        issue_v1(p, n)
    while done < 3:
        p.wait(f"v{2*done+1}")
        if first:
            p.a("s_waitcnt lgkmcnt(0)")
            first = False
        pv(p, done)
        done += 1
    p.a("v_mov_b32 v14, %d" % ST)
    LBL("L_stwait")
    p.a("ds_read_b32 v247, v246 offset:8")
    for w in range(8):
        p.a(f"ds_read_b128 v[{208+4*w}:{211+4*w}], v14 offset:{16*w}")
    p.a("s_waitcnt lgkmcnt(8)")
    p.a("v_readfirstlane_b32 s57, v247")
    p.a("s_cmp_lt_u32 s57, 8")
    p.a("s_cbranch_scc1 L_stwait")
    p.a("s_waitcnt lgkmcnt(0)")
    for h in range(2):
        M = 244 + h
        p.a(f"v_max3_f32 v{M}, v{208+2*h}, v{212+2*h}, v{216+2*h}")
        p.a(f"v_max3_f32 v{M}, v{M}, v{220+2*h}, v{224+2*h}")
        p.a(f"v_max3_f32 v{M}, v{M}, v{228+2*h}, v{232+2*h}")
        p.a(f"v_max_f32 v{M}, v{M}, v{236+2*h}")
    for h in range(2):
        M = 244 + h
        for w in range(8):
            p.a(f"v_sub_f32 v{208+4*w+2*h}, v{208+4*w+2*h}, v{M}")
        p.a(f"v_sub_f32 v{240+h}, v{240+h}, v{M}")
    for h in range(2):
        for w in range(8):
            p.a(f"v_mul_f32 v{208+4*w+2*h}, s63, v{208+4*w+2*h}")
        p.a(f"v_mul_f32 v{240+h}, s63, v{240+h}")
    for h in range(2):
        for w in range(8):
            p.a(f"v_exp_f32 v{208+4*w+2*h}, v{208+4*w+2*h}")
        p.a(f"v_exp_f32 v{240+h}, v{240+h}")
    for h in range(2):
        p.a(f"v_mul_f32 v{242+h}, v{208+2*h}, v{209+2*h}")
    for w in range(1, 8):
        for h in range(2):
            p.a(f"v_fmac_f32 v{242+h}, v{208+4*w+2*h}, v{209+4*w+2*h}")
    for h in range(2):
        p.a(f"v_rcp_f32 v{242+h}, v{242+h}")
    p.a("s_nop 0")
    for h in range(2):
        p.a(f"v_mul_f32 v{242+h}, v{242+h}, v{240+h}")
    p.a("s_lshl_b32 s57, s3, 10")
    p.a("s_add_u32 s57, s57, %d" % OP)
    p.a("v_lshlrev_b32 v14, 5, v2")
    p.a("v_add_u32 v14, s57, v14")
    p.wait("v7")
    stamp(2)
    pv(p, 3)
    p.a("s_nop 4")
    for j in range(8):
        if j == 6:
            p.a("s_nop 3")
        for h in range(2):
            p.a(f"v_mul_f32 v{64+8*h+j}, v{242+h}, v{32+4*j+h}")
    p.a("s_mov_b64 exec, 0xffff")
    for h in range(2):
        for half in range(2):
            p.a(f"ds_write_b128 v14, v[{64+8*h+4*half}:{67+8*h+4*half}] offset:{512*h+16*half}")
    p.a("s_mov_b64 exec, -1")
    p.a("s_waitcnt lgkmcnt(0)")
    p.a("s_barrier")
    stamp(7)
    if "notail" in abl:
        p.a("s_branch L_fin")
    p.a("s_cmp_eq_u32 s3, 0")
    p.a("s_cbranch_scc1 L_reduce")
    p.a("s_cmp_ge_u32 s53, 9")
    p.a("s_cbranch_scc1 L_fin")
    p.a("s_cmp_ge_u32 s3, 4")
    p.a("s_cbranch_scc1 L_stageA")
    p.a("s_cmp_eq_u32 s3, 1")
    p.a("s_cbranch_scc1 L_final")
    p.a("s_branch L_fin")

    LBL("L_reduce")
    A("s_setprio 3")
    A("v_add_u32 v14, %d, v12" % OP)
    for w in range(8):
        A(f"ds_read_b128 v[{64+4*w}:{67+4*w}], v14 offset:{1024*w}")
    A("s_lshl_b32 s57, s52, 14")
    A("s_lshl_b32 s58, s53, 4")
    A("s_add_u32 s57, s57, s58")
    A("s_add_u32 s57, s57, %d" % WS_OM)
    A("v_lshrrev_b32 v13, 3, v1")
    A("v_lshlrev_b32 v13, 11, v13")
    A("v_and_b32 v15, 1, v1")
    A("v_lshl_add_u32 v13, v15, 10, v13")
    A("v_bfe_u32 v15, v1, 1, 2")
    A("v_lshl_add_u32 v13, v15, 8, v13")
    A("v_mov_b32 v17, s44")
    A("v_mov_b32 v19, s45")
    A("s_waitcnt lgkmcnt(6)")
    for r in range(4):
        A(f"v_add_f32 v{64+r}, v{64+r}, v{68+r}")
    A("s_waitcnt lgkmcnt(4)")
    for r in range(4):
        A(f"v_add_f32 v{72+r}, v{72+r}, v{76+r}")
    A("s_waitcnt lgkmcnt(2)")
    for r in range(4):
        A(f"v_add_f32 v{80+r}, v{80+r}, v{84+r}")
    for r in range(4):
        A(f"v_add_f32 v{64+r}, v{64+r}, v{72+r}")
    A("s_waitcnt lgkmcnt(0)")
    for r in range(4):
        A(f"v_add_f32 v{88+r}, v{88+r}, v{92+r}")
    for r in range(4):
        A(f"v_add_f32 v{80+r}, v{80+r}, v{88+r}")
    for r in range(4):
        A(f"v_add_f32 v{64+r}, v{64+r}, v{80+r}")
    A("v_cvt_pk_bf16_f32 v16, v64, v65")
    A("v_cvt_pk_bf16_f32 v18, v66, v67")
    stamp(8)
    if fast:
        A("s_cmp_eq_u32 s78, 0")
        A("s_cbranch_scc1 L_red_fast")
    A(f"buffer_store_dwordx4 v[16:19], v13, {SWS}, s57 offen sc1")
    A("s_branch L_fin")
    if fast:
        LBL("L_red_fast")
        A(f"buffer_store_dwordx4 v[16:19], v13, {SWS}, s57 offen{ast}")
        A("s_branch L_fin")

    def tagpieces():
        A("s_mul_i32 s82, s44, 0x85ebca77")
        A("s_lshr_b32 s80, s45, 20")
        A("s_bfe_u32 s81, s45, 0xc0008")
        A("s_add_u32 s82, s82, s84")
        A("s_bfe_u32 s83, s82, 0xc0008")
        A("s_lshr_b32 s82, s82, 20")

    LBL("L_stageA")
    A("s_sub_u32 s59, s3, 4")
    A("s_lshl_b32 s57, s52, 14")
    A("s_lshl_b32 s58, s59, 12")
    A("s_add_u32 s57, s57, s58")
    A("s_add_u32 s57, s57, %d" % WS_OM)

    def sa_loads():
        for ks in range(2):
            for h in range(2):
                r = 64 + 8 * ks + 4 * h
                A(f"buffer_load_dwordx4 v[{r}:{r+3}], v12, {SWS}, s57 offen offset:{2048*ks+1024*h}{ald}")
    sa_loads()
    A("v_lshrrev_b32 v14, 2, v2")
    A("v_lshl_add_u32 v14, v3, 3, v14")
    A("v_lshlrev_b32 v14, 7, v14")
    A("v_and_b32 v13, 3, v2")
    A("v_lshl_add_u32 v14, v13, 3, v14")
    A("s_lshl_b32 s58, s59, 13")
    A("s_add_u32 s58, s58, %d" % WOS)
    A("v_add_u32 v14, s58, v14")
    for t in range(4):
        for ks in range(2):
            for h in range(2):
                r = 128 + 8 * t + 4 * ks + 2 * h
                A(f"ds_read_b64_tr_b16 v[{r}:{r+1}], v14 offset:{4096*ks+512*h+32*t}")
    A("s_lshl_b32 s58, s53, 2")
    A("s_add_u32 s58, s58, s59")
    A("s_lshl_b32 s58, s58, 4")
    A("s_add_u32 s58, s58, s52")
    A("s_lshl_b32 s58, s58, 10")
    A("s_add_u32 s58, s58, %d" % WS_PM)
    A("s_mul_i32 s80, s59, 4608")
    A("v_mul_u32_u24 v20, 272, v3")
    A("v_lshl_add_u32 v20, v2, 4, v20")
    A("v_add_u32 v20, s80, v20")
    A("v_mul_u32_u24 v21, 272, v2")
    A("v_lshl_add_u32 v21, v3, 4, v21")
    A("s_lshl_b32 s80, s59, 6")
    A("v_add_u32 v21, s80, v21")
    tagpieces()
    A("v_mov_b32 v22, 0xfff")
    A("s_mov_b32 s64, 0")
    LBL("L_sa_poll")
    for gi in range(4):
        r = 64 + 4 * gi
        A(f"s_waitcnt vmcnt({3-gi})")
        A(f"v_xor_b32 v17, s44, v{r+1}")
        A(f"v_xor_b32 v18, s45, v{r+3}")
        if gi == 0:
            A("v_or_b32 v16, v17, v18")
        else:
            A("v_or3_b32 v16, v16, v17, v18")
        A(f"v_mov_b32 v{160+2*gi}, v{r}")
        A(f"v_mov_b32 v{161+2*gi}, v{r+2}")
    A("v_cmp_ne_u32 vcc, 0, v16")
    A("s_nop 1")
    A("s_cmp_eq_u64 vcc, 0")
    A("s_cbranch_scc1 L_sa_go")
    A("s_add_u32 s64, s64, 1")
    A("s_cmp_gt_u32 s64, %d" % SPIN_MAX)
    A("s_cbranch_scc1 L_sa_go")
    sa_loads()
    A("s_branch L_sa_poll")
    LBL("L_sa_go")
    stamp(8)
    A("s_waitcnt lgkmcnt(0)")
    for ks in range(2):
        for t in range(4):
            r = 128 + 8 * t + 4 * ks
            c = "0" if ks == 0 else f"v[{32+4*t}:{35+4*t}]"
            A(f"v_mfma_f32_16x16x32_bf16 v[{32+4*t}:{35+4*t}], v[{r}:{r+3}], v[{160+4*ks}:{163+4*ks}], {c}")
    A("s_nop 4")
    for t in range(4):
        if t:
            A("s_nop 0")
        A(f"ds_write_b128 v20, v[{32+4*t}:{35+4*t}] offset:{1088*t}")
    A("s_waitcnt lgkmcnt(0)")
    A("s_barrier")
    for w in range(4):
        A(f"ds_read_b128 v[{32+4*w}:{35+4*w}], v21 offset:{4608*w}")
    A("s_waitcnt lgkmcnt(2)")
    for r in range(4):
        A(f"v_add_f32 v{32+r}, v{32+r}, v{36+r}")
    A("s_waitcnt lgkmcnt(0)")
    for r in range(4):
        A(f"v_add_f32 v{40+r}, v{40+r}, v{44+r}")
    for r in range(4):
        A(f"v_add_f32 v{32+r}, v{32+r}, v{40+r}")
    for r in range(4):
        A(f"v_bfi_b32 v{32+r}, v22, s{80+r}, v{32+r}")
    A(f"buffer_store_dwordx4 v[32:35], v12, {SWS}, s58 offen{bst}")
    stamp(9)
    A("s_branch L_fin")

    LBL("L_final")
    A("s_mul_i32 s57, s52, 9")
    A("s_add_u32 s57, s57, s53")
    A("s_lshr_b32 s58, s57, 2")
    A("s_lshl_b32 s58, s58, 14")
    A("s_and_b32 s59, s57, 3")
    A("s_lshl_b32 s59, s59, 8")
    A("s_add_u32 s72, s58, s59")
    A("s_add_u32 s72, s72, %d" % WS_PM)
    A("s_add_u32 s73, s72, 4096")
    A("s_add_u32 s74, s72, 8192")
    A("s_add_u32 s75, s72, 12288")
    A("v_lshlrev_b32 v14, 10, v3")
    A("v_lshl_add_u32 v14, v2, 4, v14")
    A("s_and_b32 s58, s57, 15")
    A("s_mul_i32 s58, s58, 1152")
    A("s_lshr_b32 s59, s57, 4")
    A("s_lshl_b32 s59, s59, 7")
    A("s_add_u32 s58, s58, s59")
    A("v_lshlrev_b32 v15, 3, v2")
    tagpieces()
    A("s_mov_b32 s64, 0")
    A("s_mov_b32 s79, 0xf")
    A("s_barrier")
    LBL("L_fi_poll")
    for j in range(4):
        r = 64 + 4 * j
        A(f"s_bitcmp0_b32 s79, {j}")
        A(f"s_cbranch_scc1 L_fl{j}")
        A(f"buffer_load_dwordx4 v[{r}:{r+3}], v14, {SWS}, s{72+j} offen{bld}")
        LBL(f"L_fl{j}")
    A("s_waitcnt vmcnt(0)")
    for j in range(4):
        r = 64 + 4 * j
        A(f"s_bitcmp0_b32 s79, {j}")
        A(f"s_cbranch_scc1 L_fc{j}")
        A(f"v_xor_b32 v16, s80, v{r}")
        A(f"v_xor_b32 v17, s81, v{r+1}")
        A(f"v_xor_b32 v18, s82, v{r+2}")
        A(f"v_xor_b32 v19, s83, v{r+3}")
        A("v_or3_b32 v20, v16, v17, v18")
        A("v_or_b32 v20, v20, v19")
        A("v_and_b32 v20, 0xfff, v20")
        A("v_cmp_ne_u32 vcc, 0, v20")
        A("s_nop 1")
        A("s_cmp_lg_u64 vcc, 0")
        A(f"s_cbranch_scc1 L_fc{j}")
        for d in range(4):
            A(f"v_mov_b32 v{r+d}, v{16+d}")
        A(f"s_bitset0_b32 s79, {j}")
        LBL(f"L_fc{j}")
    A("s_cmp_eq_u32 s79, 0")
    A("s_cbranch_scc1 L_fi_go")
    if fsleep:
        A(f"s_sleep {fsleep}")
    A("s_add_u32 s64, s64, 1")
    A("s_cmp_le_u32 s64, %d" % SPIN_MAX)
    A("s_cbranch_scc1 L_fi_poll")
    LBL("L_fi_go")
    stamp(9)
    for d in range(4):
        A(f"v_add_f32 v{64+d}, v{64+d}, v{68+d}")
        A(f"v_add_f32 v{72+d}, v{72+d}, v{76+d}")
    for d in range(4):
        A(f"v_add_f32 v{20+d}, v{64+d}, v{72+d}")
    for d in range(4):
        A(f"v_add_f32 v{24+d}, v{64+d}, v{72+d}")
    for d in range(4):
        A(f"v_permlane32_swap_b32 v{20+d}, v{24+d}")
    A("s_nop 0")
    for d in range(4):
        A(f"v_add_f32 v{28+d}, v{20+d}, v{24+d}")
    for d in range(4):
        A(f"v_add_f32 v{20+d}, v{20+d}, v{24+d}")
    for d in range(4):
        A(f"v_permlane16_swap_b32 v{28+d}, v{20+d}")
    A("s_nop 0")
    for d in range(4):
        A(f"v_add_f32 v{20+d}, v{20+d}, v{28+d}")
    A("v_cvt_pk_bf16_f32 v16, v20, v21")
    A("v_cvt_pk_bf16_f32 v17, v22, v23")
    A("s_mov_b64 exec, 0xffff")
    A(f"buffer_store_dwordx2 v[16:17], v15, {SOUT}, s58 offen")
    A("s_mov_b64 exec, -1")
    A("s_cmp_lg_u32 s2, 0")
    A("s_cbranch_scc1 L_fin")
    A("v_mov_b32 v20, s44")
    A("v_mov_b32 v21, s84")
    A("v_mov_b32 v13, 0")
    A("s_mov_b32 s57, %d" % WS_EP)
    A("s_mov_b64 exec, 1")
    A(f"buffer_store_dwordx2 v[20:21], v13, {SWS}, s57 offen")
    A("s_mov_b64 exec, -1")
    A("s_branch L_fin")

    LBL("L_fallback")
    pf = Path(out)
    A("s_waitcnt lgkmcnt(0)")
    A("s_mov_b32 s46, 0")
    A("s_mov_b32 s83, 15")
    LBL("L_fb_loop")
    qtask_srd()
    q_loads(pf)
    A("s_waitcnt vmcnt(0)")
    q_compute(pf)
    A("s_waitcnt lgkmcnt(0)")
    A("s_barrier")
    A("s_cmp_lg_u32 s3, 0")
    A("s_cbranch_scc1 L_fb_next")
    q_publish(pf, "x")
    A("s_waitcnt vmcnt(0)")
    LBL("L_fb_next")
    A("s_barrier")
    A("s_add_u32 s46, s46, 1")
    A("s_cmp_lt_u32 s46, 16")
    A("s_cbranch_scc1 L_fb_loop")
    A("s_cmp_lg_u32 s3, 1")
    A("s_cbranch_scc1 L_fb_done")
    q_poll_load(pf)
    A("s_waitcnt vmcnt(0)")
    q_finish(pf)
    LBL("L_fb_done")
    A("s_waitcnt lgkmcnt(0)")
    A("s_mov_b32 s78, 1")
    A("s_barrier")
    for jj in range(4):
        A(f"ds_read_b128 v[{16+4*jj}:{19+4*jj}], v14 offset:{64*jj}")
    A("s_branch L_qk")

    LBL("L_fin")
    if dbgst:
        A("s_cmp_lg_u32 s3, 1")
        A("s_cbranch_scc1 L_end")
        A("s_cmp_ge_u32 s53, 9")
        A("s_cbranch_scc1 L_end")
        A("s_waitcnt vmcnt(0)")
        stamp(3)
        A("s_mov_b32 s84, s16")
        A("s_mov_b32 s85, s17")
        A("s_mov_b32 s86, 256")
        A("s_mov_b32 s87, 0x20000")
        A("s_waitcnt lgkmcnt(0)")
        A("s_not_b32 s57, s66")
        A("v_mov_b32 v12, 0")
        A("s_mov_b64 exec, 1")
        for k, r in enumerate(("s57", "s66", "s100", "s68", "s70", f"s{sreg(4)}", f"s{sreg(5)}", f"s{sreg(6)}", f"s{sreg(7)}", f"s{sreg(8)}", f"s{sreg(9)}")):
            A(f"v_mov_b32 v16, {r}")
            A(f"buffer_atomic_umax v16, v12, s[84:87], 0 offen offset:{4*k} sc1")
            A("s_nop 1")
        A("s_branch L_end")
    if stamps:
        A("s_waitcnt vmcnt(0)")
        stamp(3)
        A("s_lshl_b32 s57, s2, 3")
        A("s_add_u32 s57, s57, s3")
        A("s_lshl_b32 s57, s57, 4")
        A("s_add_u32 s84, s18, 0x%x" % WS_STAMP)
        A("s_addc_u32 s85, s19, 0")
        A("s_mov_b32 s86, 0x400000")
        A("s_mov_b32 s87, 0x20000")
        A("s_waitcnt lgkmcnt(0)")
        A("v_mov_b32 v8, s66")
        A("v_mov_b32 v9, s67")
        A("v_mov_b32 v10, s100")
        A("v_mov_b32 v11, s101")
        for i in (1, 2, 4, 5, 6, 7, 8, 9):
            A(f"s_sub_u32 s{sreg(i)}, s{sreg(i)}, s66")
        A("s_getreg_b32 s58, hwreg(HW_REG_XCC_ID)")
        A("v_mov_b32 v16, s58")
        A("v_mov_b32 v17, s68")
        A("v_mov_b32 v18, s70")
        A("v_mov_b32 v19, s64")
        for k, i in enumerate((4, 5, 6, 7)):
            A(f"v_mov_b32 v{20+k}, s{sreg(i)}")
        for k, i in enumerate((8, 9)):
            A(f"v_mov_b32 v{24+k}, s{sreg(i)}")
        A("v_mov_b32 v26, 0")
        A("v_mov_b32 v27, 0")
        A("v_mov_b32 v12, s57")
        A("s_mov_b32 s58, 0x100000")
        A("s_mov_b32 s59, 0x200000")
        A("s_mov_b32 s57, 0x300000")
        A("s_mov_b64 exec, 1")
        A("buffer_store_dwordx4 v[8:11], v12, s[84:87], 0 offen")
        A("buffer_store_dwordx4 v[16:19], v12, s[84:87], s58 offen")
        A("buffer_store_dwordx4 v[20:23], v12, s[84:87], s59 offen")
        A("buffer_store_dwordx4 v[24:27], v12, s[84:87], s57 offen")
    LBL("L_end")
    A("s_endpgm")
    out.append('.section .rodata,"a"')
    out.append(".p2align 6")
    out.append(f".amdhsa_kernel {KNAME}")
    out.append("  .amdhsa_next_free_vgpr 256")
    out.append("  .amdhsa_next_free_sgpr 102")
    out.append("  .amdhsa_accum_offset 256")
    out.append("  .amdhsa_group_segment_fixed_size 0")
    out.append("  .amdhsa_kernarg_size 64")
    out.append("  .amdhsa_user_sgpr_count 2")
    out.append("  .amdhsa_user_sgpr_kernarg_segment_ptr 1")
    out.append("  .amdhsa_system_sgpr_workgroup_id_x 1")
    out.append("  .amdhsa_float_denorm_mode_32 3")
    out.append(".end_amdhsa_kernel")
    return "\n".join(out) + "\n"


if __name__ == "__main__":
    C = dict(topcode=8, abl=("nocode",), fsleep=0, wkinit=4, wk0=6, wk1=6, wv=6)
    open("standalone__sliding_block_cached__sampling.s", "w").write(gen(**C))
    open("final.s", "w").write(gen(**C))
```

```python
import sys

KNAME = "standalone__sliding_block_cached__sampling_kernel"

KR = 0
WOS = 98304
WQS = 131072
QR = 149504
OP = 131072
PB = 139264
QB = 157696
ST = 158208
FL = 158336
XR = 0
ZT = 158464
LDS_BYTES = 159488

WS_QP = 0
WS_OM = 1 << 20
WS_EP = (1 << 20) + (768 << 10)
WS_PM = 2 << 20
WS_BYTES = 4 << 20
WS_STAMP = 512 << 20

SPIN_MAX = 200000
QSPIN_MAX = 60


class Path:
    def __init__(self, out, q=None):
        self.out = out
        self.q = list(q) if q else []
        self.count = 0

    def a(self, s):
        self.out.append("  " + s)

    def vm(self, s, tag):
        self.a(s)
        self.count += 1
        self.q.append(tag)
        assert len(self.q) <= 63, "too many outstanding vmem ops"

    def wait(self, tag, extra=""):
        idx = max([i for i, t in enumerate(self.q) if t == tag], default=-1)
        if idx < 0:
            if extra:
                self.a(f"s_waitcnt {extra}")
            return
        n = len(self.q) - 1 - idx
        self.a(f"s_waitcnt vmcnt({n}) {extra}".rstrip())
        self.q = self.q[idx + 1:]

    def throttle(self, w):
        if len(self.q) > w:
            self.a(f"s_waitcnt vmcnt({w})")
            self.q = self.q[len(self.q) - w:] if w else []

    def pending(self, tag):
        return tag in self.q


def gen(stamps=False, fast=True, force_fallback=False, wk0=5, wk1=5, wv=5, nslow=8, wkinit=3, qpolls=(10, 13, 16, 19, 22, 26), qpubs=(8, 9, 10, 12),
        w1add=1, w0add=1, fsleep=2, vburst=8, abl=(), qst='', qld=' sc1', xld=' nt', ast='', ald=' sc1',
        bst=' sc1', bld=' sc1', wo_at=12, yprio=0, dbgst=False, tlbwarm=False, topcode=0, codeb=16, vpol=' nt', kpol=' nt', asleep=0):
    out = []
    A = lambda s: out.append("  " + s)
    LBL = lambda s: out.append(s + ":")
    hdr = """; Fused q-projection + sliding-window GQA decode attention + output projection for gfx950 (MI355X).
; Kernarg (8 pointers): x[16,576] k_cache[16,16,4096,128] v_cache[...] wq[576,4096] wo[4096,576] out[16,576] debug ws
;
;   K: LDS-DMA (xor-swizzled source) -> ds_read_b128 -> registers in MFMA layout, held until q is known
;   q: workgroup (b,hkv) computes 16 columns of q = x*wq for all 16 batches (MFMA, transposing LDS reads); the 16
; Every hand-off word carries a tag derived from an epoch counter kept in d_ws (read at entry, +1, written back by the
"""
    out.extend(hdr.rstrip("\n").split("\n"))
    out.append(f"; @launch grid=(256,1,1) block=(512,1,1) lds={LDS_BYTES}")
    out.append('.amdgcn_target "amdgcn-amd-amdhsa--gfx950"')
    out.append(".text")
    out.append(f".globl {KNAME}")
    out.append(".p2align 8")
    out.append(f".type {KNAME},@function")
    LBL(KNAME)

    SK, SV, SWQ, SX, SWO, SWS, SOUT = "s[20:23]", "s[24:27]", "s[28:31]", "s[32:35]", "s[36:39]", "s[40:43]", "s[48:51]"

    def sreg(i):
        return (66 + 2 * i if i < 3 else 100) if i < 4 else 88 + 2 * (i - 4)

    def stamp(i):
        if stamps:
            A(f"s_memrealtime s[{sreg(i)}:{sreg(i)+1}]")

    A("s_cmp_ge_u32 s2, 256")
    A("s_cbranch_scc1 L_end")
    A("s_load_dwordx16 s[4:19], s[0:1], 0")
    stamp(0)
    if stamps:
        for i in range(4, 10):
            A(f"s_mov_b64 s[{sreg(i)}:{sreg(i)+1}], 0")
        A("s_mov_b32 s64, 0")
    A("v_lshrrev_b32 v2, 6, v0")
    A("v_and_b32 v1, 63, v0")
    A("v_readfirstlane_b32 s3, v2")
    A("v_and_b32 v2, 15, v1")
    A("v_lshrrev_b32 v3, 4, v1")
    A("s_getpc_b64 s[58:59]")
    LBL("L_pc0")
    A("v_lshlrev_b32 v13, 7, v0")
    A("v_min_u32 v13, L_end-L_pc0, v13")
    A("global_load_dword v60, v13, s[58:59]")
    A("v_xor_b32 v13, v2, v3")
    A("v_lshlrev_b32 v13, 4, v13")
    A("v_lshl_or_b32 v4, v3, 8, v13")
    A("s_lshl_b32 s57, s2, 8")
    A("s_add_u32 s57, s57, s3")
    A("s_lshl_b32 s57, s57, 12")
    A("s_add_u32 s57, s57, 0xc0000")
    A("s_mov_b32 s22, 0x39000")
    A("s_mov_b32 s23, 0x20000")
    A("s_mul_i32 s56, s3, 12288")
    A("s_mov_b32 m0, s56")
    A("v_xor_b32 v5, 64, v4")
    A("v_xor_b32 v6, 0x80, v4")
    A("v_xor_b32 v7, 0xc0, v4")

    def issue_k1(p, n, force_m0=False):
        bi, i = n // 4, n % 4
        if i == 0 and bi >= 3:
            p.a("s_waitcnt lgkmcnt(0)")
        if (i == 0 and n) or force_m0:
            p.a(f"s_add_u32 m0, s56, {(bi % 3) * 4096}")
            p.a("s_nop 0")
        so = "0" if bi == 0 else "s54"
        p.vm(f"buffer_load_dwordx4 v{4+i}, {SK}, {so} offen offset:{i*1024}{kpol} lds", f"k{bi}")
        if i == 3:
            p.a("s_add_u32 s54, s54, 0x8000" if bi else "s_mov_b32 s54, 0x8000")

    A("s_waitcnt lgkmcnt(0)")
    A("s_add_u32 s20, s6, s57")
    A("s_addc_u32 s21, s7, 0")
    p0 = Path(out)
    assert wkinit >= 4 and wkinit <= 12
    for n in range(wkinit):
        issue_k1(p0, n)
    A("s_and_b32 s52, s2, 15")
    A("s_lshr_b32 s53, s2, 4")
    A("v_mov_b32 v14, %d" % FL)
    A("v_mov_b32 v16, 0")
    A("v_mov_b32 v17, 0")
    A("v_mov_b32 v18, 0")
    A("v_mov_b32 v19, 0")
    A("s_mov_b64 exec, 1")
    A("ds_write_b128 v14, v[16:19]")
    A("s_mov_b64 exec, -1")
    A("s_waitcnt lgkmcnt(0)")
    A("s_barrier")
    A("s_add_u32 s76, s18, %d" % WS_EP)
    A("s_addc_u32 s77, s19, 0")
    A("s_load_dwordx2 s[44:45], s[76:77], 0")
    A("v_lshrrev_b32 v52, 1, v1")
    A("v_lshlrev_b32 v52, 13, v52")
    A("v_and_b32 v14, 1, v1")
    A("v_lshl_add_u32 v52, v14, 4, v52")
    A("v_mul_u32_u24 v53, 1152, v2")
    A("v_lshl_add_u32 v53, v3, 4, v53")
    A("s_mov_b32 s46, s53")
    A("s_mov_b32 s31, 0x20000")
    A("s_mov_b32 s32, s4")
    A("s_mov_b32 s33, s5")
    A("s_mov_b32 s34, 18432")
    A("s_mov_b32 s35, 0x20000")
    A("s_add_u32 s24, s8, s57")
    A("s_addc_u32 s25, s9, 0")
    A("s_lshl_b32 s76, s3, 18")
    A("s_add_u32 s72, s76, %d" % (16 << 18))
    A("s_lshl_b32 s78, s3, 6")
    A("s_add_u32 s73, s78, 1024")
    A("s_lshl_b32 s75, s3, 10")
    A("s_add_u32 s75, s75, %d" % WQS)
    A("s_add_u32 s74, s75, 16384")
    A("s_mov_b32 s57, %d" % ZT)
    A("s_cmp_lt_u32 s3, 2")
    A("s_cselect_b32 s72, s72, 0x7ff00000")
    A("s_cselect_b32 s73, s73, 0x7ff00000")
    A("s_cselect_b32 s74, s74, s57")

    def qtask_srd():
        A("s_lshl_b32 s57, s52, 9")
        A("s_lshl_b32 s58, s46, 5")
        A("s_add_u32 s57, s57, s58")
        A("s_sub_u32 s30, %d, s57" % (0 if "nowq" in abl else 4718592))
        if "nowq" in abl:
            A("s_mov_b32 s30, 0")
        A("s_add_u32 s28, s10, s57")
        A("s_addc_u32 s29, s11, 0")

    def q_loads(p):
        p.a("s_mov_b32 m0, s75")
        p.a("s_lshl_b32 s76, s3, 18")
        p.vm(f"buffer_load_dwordx4 v52, {SWQ}, s76 offen nt lds", "wq")
        p.a("s_add_u32 m0, s75, 8192")
        p.a("s_add_u32 s77, s76, %d" % (8 << 18))
        p.vm(f"buffer_load_dwordx4 v52, {SWQ}, s77 offen nt lds", "wq")
        p.a("s_mov_b32 m0, s74")
        p.a("s_lshl_b32 s78, s3, 6")
        p.vm(f"buffer_load_dwordx4 v52, {SWQ}, s72 offen nt lds", "wq")
        p.vm(f"buffer_load_dwordx4 v[32:35], v53, {SX}, s78 offen{xld}", "wq")
        p.vm(f"buffer_load_dwordx4 v[36:39], v53, {SX}, s78 offen offset:512{xld}", "wq")
        p.vm(f"buffer_load_dwordx4 v[40:43], v53, {SX}, s73 offen{xld}", "wq")

    qtask_srd()
    q_loads(p0)
    A("v_lshl_or_b32 v8, v2, 8, v13")
    A("v_add_u32 v8, s56, v8")
    A("v_xor_b32 v9, 64, v8")
    A("v_xor_b32 v10, 0x80, v8")
    A("v_xor_b32 v11, 0xc0, v8")
    A("v_lshlrev_b32 v12, 4, v1")
    A("s_mov_b32 s26, s22")
    A("s_mov_b32 s27, 0x20000")
    A("s_mov_b32 s55, 0")
    A("s_mov_b32 s60, 0x05040100")
    A("s_mov_b32 s61, 0x07060302")
    A("s_mov_b32 s62, 0x3db504f3")
    A("s_mov_b32 s63, 0x3fb8aa3b")
    A("s_getreg_b32 s47, hwreg(HW_REG_XCC_ID)")
    A("s_and_b32 s47, s47, 7")
    A("s_mov_b32 s83, s47")
    A("s_lshl_b32 s58, s52, 8")
    A("s_lshl_b32 s59, s3, 5")
    A("s_add_u32 s58, s58, s59")
    A("s_mul_i32 s58, s58, 1152")
    A("s_lshl_b32 s59, s53, 7")
    A("s_add_u32 s58, s58, s59")
    A("s_cmp_lt_u32 s53, 9")
    A("s_cselect_b32 s38, %d, 0" % (0 if "nowo" in abl else 35840))
    A("s_cselect_b32 s58, s58, 0")
    A("s_mov_b32 s39, 0x20000")
    A("s_add_u32 s36, s12, s58")
    A("s_addc_u32 s37, s13, 0")
    A("v_lshrrev_b32 v14, 3, v1")
    A("v_mul_u32_u24 v14, 1152, v14")
    A("v_and_b32 v13, 7, v1")
    A("v_lshl_add_u32 v14, v13, 4, v14")
    A("s_lshl_b32 s65, s3, 12")
    A("s_add_u32 s65, s65, %d" % WOS)

    def issue_wo1(p, e):
        p.a(f"s_add_u32 m0, s65, {1024*e}")
        p.a(f"s_mov_b32 s57, {8*1152*e}")
        p.vm(f"buffer_load_dwordx4 v14, {SWO}, s57 offen nt lds", "wo")

    A("s_mov_b32 s40, s18")
    A("s_mov_b32 s41, s19")
    A("s_mov_b32 s42, %d" % WS_BYTES)
    A("s_mov_b32 s43, 0x20000")
    A("s_mov_b32 s48, s14")
    A("s_mov_b32 s49, s15")
    A("s_mov_b32 s50, 18432")
    A("s_mov_b32 s51, 0x20000")
    A("v_lshrrev_b32 v54, 2, v2")
    A("v_lshl_add_u32 v54, v3, 3, v54")
    A("v_lshlrev_b32 v54, 5, v54")
    A("v_and_b32 v13, 3, v2")
    A("v_lshl_add_u32 v54, v13, 3, v54")
    A("s_lshl_b32 s59, s3, 10")
    A("s_add_u32 s59, s59, %d" % QR)
    A("v_add_u32 v55, s59, v12")

    def q_compute(p, count=False):
        p.a("v_add_u32 v13, s75, v54")
        p.a("v_add_u32 v15, s74, v54")
        p.a("ds_read_b64_tr_b16 v[96:97], v13")
        p.a("ds_read_b64_tr_b16 v[98:99], v13 offset:128")
        p.a("ds_read_b64_tr_b16 v[100:101], v13 offset:8192")
        p.a("ds_read_b64_tr_b16 v[102:103], v13 offset:8320")
        p.a("ds_read_b64_tr_b16 v[104:105], v15")
        p.a("ds_read_b64_tr_b16 v[106:107], v15 offset:128")
        p.a("s_waitcnt lgkmcnt(4)")
        p.a("v_mfma_f32_16x16x32_bf16 v[48:51], v[96:99], v[32:35], 0")
        p.a("s_waitcnt lgkmcnt(2)")
        p.a("v_mfma_f32_16x16x32_bf16 v[48:51], v[100:103], v[36:39], v[48:51]")
        p.a("s_waitcnt lgkmcnt(0)")
        p.a("s_cmp_ge_u32 s3, 2")
        p.a("s_cbranch_scc1 3f")
        p.a("v_mfma_f32_16x16x32_bf16 v[48:51], v[104:107], v[40:43], v[48:51]")
        out.append("3:")
        if count:
            p.a("s_add_u32 s44, s44, 1")
            p.a("s_addc_u32 s84, s45, 0")
            p.a("s_mul_i32 s45, s44, 0x9e3779b1")
            p.a("s_xor_b32 s45, s45, s84")
        p.a("v_mov_b32 v13, %d" % FL)
        p.a("v_mov_b32 v16, 1")
        p.a("s_nop 6")
        p.a("ds_write_b128 v55, v[48:51]")
        if count:
            p.a("s_mov_b64 exec, 1")
            p.a("ds_add_u32 v13, v16 offset:12")
            p.a("s_mov_b64 exec, -1")

    if tlbwarm:
        A("s_cmp_lg_u32 s3, 3")
        A("s_cbranch_scc1 L_notlb")
        A("v_mov_b32 v13, 0")
        A("s_mov_b32 s57, %d" % WS_PM)
        A("s_mov_b64 exec, 1")
        A(f"buffer_load_dword v60, v13, {SV}, 0 offen nt")
        A(f"buffer_load_dword v61, v13, {SWO}, 0 offen nt")
        A(f"buffer_load_dword v62, v13, {SWS}, s57 offen nt")
        A(f"buffer_load_dword v63, v13, {SOUT}, 0 offen nt")
        A("s_mov_b64 exec, -1")
        LBL("L_notlb")
    if yprio:
        A("s_cmp_lt_u32 s3, 4")
        A("s_cbranch_scc1 L_noprio")
        A(f"s_setprio {yprio}")
        LBL("L_noprio")
    if "nopub" not in abl:
        A("s_cmp_eq_u32 s3, 0")
        A("s_cbranch_scc1 L_w0")
    if "nopoll" not in abl:
        A("s_cmp_eq_u32 s3, 1")
        A("s_cbranch_scc1 L_w1")
    if "nocode" not in abl:
        A("s_lshl_b32 s57, s53, 3")
        A("s_add_u32 s57, s57, s3")
        A("s_cmp_eq_u32 s57, 2")
        A("s_cbranch_scc1 L_w2")
    q0 = list(p0.q)

    def read_k(p, bi):
        for jj in range(4):
            r = 128 + 16 * bi + 4 * jj
            p.a(f"ds_read_b128 v[{r}:{r+3}], v{8+jj} offset:{(bi % 3) * 4096}")

    def vreg(hb):
        return 64 + 16 * hb

    def issue_v1(p, n):
        hb, i = n // 4, n % 4
        r = vreg(hb) + 4 * i
        p.vm(f"buffer_load_dwordx4 v[{r}:{r+3}], v12, {SV}, s55 offen offset:{i*1024}{vpol}", f"v{hb}")
        if i == 3:
            p.a("s_add_u32 s55, s55, 0x8000")

    def q_publish(p, tag):
        p.a("v_add_u32 v13, %d, v12" % QR)
        for w in range(8):
            p.a(f"ds_read_b128 v[{96+4*w}:{99+4*w}], v13 offset:{1024*w}")
        p.a("s_lshl_b32 s57, s52, 14")
        p.a("s_lshl_b32 s58, s46, 6")
        p.a("s_add_u32 s57, s57, s58")
        p.a("v_lshlrev_b32 v13, 10, v2")
        p.a("v_lshl_add_u32 v13, v3, 4, v13")
        p.a("s_add_u32 s58, s45, s83")
        p.a("v_mov_b32 v17, s44")
        p.a("v_mov_b32 v19, s58")
        p.a("s_waitcnt lgkmcnt(6)")
        for r in range(4):
            p.a(f"v_add_f32 v{96+r}, v{96+r}, v{100+r}")
        p.a("s_waitcnt lgkmcnt(4)")
        for r in range(4):
            p.a(f"v_add_f32 v{104+r}, v{104+r}, v{108+r}")
        p.a("s_waitcnt lgkmcnt(2)")
        for r in range(4):
            p.a(f"v_add_f32 v{112+r}, v{112+r}, v{116+r}")
        for r in range(4):
            p.a(f"v_add_f32 v{96+r}, v{96+r}, v{104+r}")
        p.a("s_waitcnt lgkmcnt(0)")
        for r in range(4):
            p.a(f"v_add_f32 v{120+r}, v{120+r}, v{124+r}")
        for r in range(4):
            p.a(f"v_add_f32 v{112+r}, v{112+r}, v{120+r}")
        for r in range(4):
            p.a(f"v_add_f32 v{96+r}, v{96+r}, v{112+r}")
        p.a("v_cvt_pk_bf16_f32 v16, v96, v97")
        p.a("v_cvt_pk_bf16_f32 v18, v98, v99")
        if tag:
            p.vm(f"buffer_store_dwordx4 v[16:19], v13, {SWS}, s57 offen{qst}", tag)
        else:
            p.a(f"buffer_store_dwordx4 v[16:19], v13, {SWS}, s57 offen{qst}")

    NVPRE = 8

    def kphase(p, wadd=0, polls=(), poll_issue=None, poll_check=None, pubs=(), pub_try=None):
        st = {"read": 0, "poll": 0, "m0": False, "qc": False}

        def service(nissued):
            if not st["qc"] and not p.pending("wq"):
                stamp(4)
                q_compute(p, True)
                st["qc"] = True
            while st["read"] < 8 and 4 * st["read"] + 4 <= nissued and not p.pending(f"k{st['read']}"):
                read_k(p, st["read"])
                st["read"] += 1
        for n in range(wkinit, 32):
            w = (wk0 if n < nslow else wk1) + wadd
            nk = sum(1 for t in p.q if t != "wq")
            if nk >= w:
                p.throttle(w - 1)
            if st["poll"] and n >= st["poll"] + 2:
                k = p.count - st["mark"]
                poll_check(p, st["poll"], k)
                st["poll"] = 0
            service(n)
            if n in pubs:
                if n == max(pubs) and not st["qc"]:
                    p.wait("wq")
                    service(n)
                if st["qc"]:
                    pub_try(p, n)
            if n in polls and not st["poll"] and st["qc"]:
                poll_issue(p, n)
                st["poll"] = n
                st["mark"] = p.count
            if n % 4 == 0 and n // 4 >= 3 and st["read"] <= n // 4 - 3:
                p.wait(f"k{n // 4 - 3}")
                service(n)
            assert n % 4 or n // 4 < 3 or st["read"] > n // 4 - 3
            issue_k1(p, n, force_m0=not st["m0"])
            st["m0"] = True
            if n + 1 == wo_at:
                for e in range(4):
                    p.throttle(w - 1)
                    service(n + 1)
                    issue_wo1(p, e)
                st["m0"] = False
        for n in range(NVPRE):
            p.throttle(wk1 + wadd - 1)
            service(32)
            issue_v1(p, n)
        p.wait("k7")
        service(32)
        assert st["read"] == 8 and st["poll"] == 0
        p.throttle(wk1 - 1)

    LBL("L_gen")
    p = Path(out, q0)
    kphase(p)
    endq = list(p.q)
    p.a("s_branch L_join")

    LBL("L_w0")
    p = Path(out, q0)
    p.a("s_mov_b32 s79, 0")

    def pub_try(p, n, last=False):
        p.a("s_cmp_lg_u32 s79, 0")
        p.a(f"s_cbranch_scc1 L_pu{n}")
        p.a("v_mov_b32 v13, %d" % FL)
        LBL(f"L_pw{n}")
        p.a("ds_read_b32 v16, v13 offset:12")
        p.a("s_waitcnt lgkmcnt(0)")
        p.a("v_readfirstlane_b32 s57, v16")
        p.a("s_cmp_lt_u32 s57, 8")
        p.a(f"s_cbranch_scc1 {'L_pw%d' % n if last else 'L_pu%d' % n}")
        p.a("s_setprio 3")
        q_publish(p, None)
        p.a("s_setprio 0")
        p.a("s_mov_b32 s79, 1")
        stamp(5)
        LBL(f"L_pu{n}")

    lastpub = max(qpubs)
    kphase(p, wadd=w0add, pubs=qpubs, pub_try=lambda pp, n: pub_try(pp, n, n == lastpub))
    assert p.q == endq, (p.q, endq)
    p.a("s_branch L_join")

    LBL("L_w1")
    p = Path(out, q0)

    def q_poll_load(p):
        p.a("s_lshl_b32 s57, s52, 14")
        p.a("s_lshl_b32 s58, s53, 10")
        p.a("s_add_u32 s57, s57, s58")
        p.a(f"buffer_load_dwordx4 v[16:19], v12, {SWS}, s57 offen{qld}")

    def q_check(p):
        p.a("v_subrev_u32 v21, s45, v19")
        p.a("v_xor_b32 v20, s44, v17")
        p.a("v_lshrrev_b32 v22, 4, v21")
        p.a("v_or_b32 v20, v20, v22")
        p.a("v_cmp_ne_u32 vcc, 0, v20")
        p.a("s_nop 1")

    def q_finish(p):
        p.a("v_mov_b32 v17, v18")
        p.a("v_lshlrev_b32 v13, 3, v1")
        p.a("v_add_u32 v13, %d, v13" % QB)
        p.a("ds_write_b64 v13, v[16:17]")

    def q_success(p):
        q_finish(p)
        p.a("v_cmp_ne_u32 vcc, s47, v21")
        p.a("s_nop 1")
        p.a("s_cmp_lg_u64 vcc, 0")
        p.a("s_cselect_b32 s57, 1, 0")
        p.a("v_mov_b32 v56, s57")
        p.a("s_mov_b32 s79, 1")

    def q_flag(p):
        p.a("v_mov_b32 v57, s79")
        p.a("v_mov_b32 v13, %d" % FL)
        p.a("s_waitcnt lgkmcnt(0)")
        p.a("s_mov_b64 exec, 1")
        p.a("ds_write_b64 v13, v[56:57]")
        p.a("s_mov_b64 exec, -1")

    def poll_issue(p, n):
        p.a("s_cmp_lg_u32 s79, 0")
        p.a(f"s_cbranch_scc1 L_pi{n}")
        q_poll_load(p)
        LBL(f"L_pi{n}")

    def poll_check(p, n, k):
        p.a("s_cmp_lg_u32 s79, 0")
        p.a(f"s_cbranch_scc1 L_pc{n}")
        p.a(f"s_waitcnt vmcnt({k})")
        q_check(p)
        if force_fallback:
            p.a(f"s_branch L_pc{n}")
        p.a("s_cmp_lg_u64 vcc, 0")
        p.a(f"s_cbranch_scc1 L_pc{n}")
        q_success(p)
        q_flag(p)
        stamp(6)
        LBL(f"L_pc{n}")

    p.a("s_mov_b32 s79, 0")
    kphase(p, wadd=w1add, polls=qpolls, poll_issue=poll_issue, poll_check=poll_check)
    assert p.q == endq, (p.q, endq)
    if "nopub" in abl:
        p.a("s_branch L_join")
    p.a("s_cmp_lg_u32 s79, 0")
    p.a("s_cbranch_scc1 L_join")
    p.a("s_mov_b32 s64, 0")
    LBL("L_qretry")
    q_poll_load(p)
    p.a("s_waitcnt vmcnt(0)")
    q_check(p)
    if not force_fallback:
        p.a("s_cmp_eq_u64 vcc, 0")
        p.a("s_cbranch_scc1 L_qok")
    p.a("s_add_u32 s64, s64, 1")
    p.a("s_cmp_le_u32 s64, %d" % (QSPIN_MAX if not force_fallback else 1))
    p.a("s_cbranch_scc1 L_qretry")
    p.a("s_mov_b32 s79, 2")
    p.a("v_mov_b32 v56, 1")
    p.a("s_branch L_qflag")
    LBL("L_qok")
    q_success(p)
    LBL("L_qflag")
    q_flag(p)

    LBL("L_join")
    p = Path(out, endq)
    p.a("v_mov_b32 v58, %d" % FL)
    p.a("v_and_b32 v13, 1, v1")
    p.a("v_lshlrev_b32 v13, 8, v13")
    p.a("v_lshl_add_u32 v13, v3, 4, v13")
    p.a("v_add_u32 v14, %d, v13" % QB)
    p.a("s_lshl_b32 s57, s3, 9")
    p.a("s_add_u32 s57, s57, %d" % PB)
    p.a("v_add_u32 v59, s57, v13")
    LBL("L_qwait")
    p.a("ds_read_b64 v[56:57], v58")
    for jj in range(4):
        p.a(f"ds_read_b128 v[{16+4*jj}:{19+4*jj}], v14 offset:{64*jj}")
    p.a("s_waitcnt lgkmcnt(4)")
    p.a("v_readfirstlane_b32 s78, v56")
    p.a("v_readfirstlane_b32 s79, v57")
    if not ({"noq", "nopub", "nopoll"} & set(abl)):
        p.a("s_cmp_eq_u32 s79, 0")
        p.a("s_cbranch_scc1 L_qwait")
        p.a("s_cmp_eq_u32 s79, 2")
        p.a("s_cbranch_scc1 L_fallback")
    LBL("L_qk")
    stamp(1)
    for n in range(8, 8 + vburst):
        issue_v1(p, n)
    p.a("v_mov_b32 v15, v59")
    p.a("s_lshl_b32 s57, s3, 9")
    p.a("s_add_u32 s57, s57, %d" % PB)
    p.a("v_and_b32 v13, 1, v3")
    p.a("v_lshlrev_b32 v13, 8, v13")
    p.a("v_and_b32 v14, 3, v2")
    p.a("v_lshl_add_u32 v13, v14, 4, v13")
    p.a("v_lshrrev_b32 v14, 2, v2")
    p.a("v_lshl_add_u32 v13, v14, 1, v13")
    p.a("v_add_u32 v13, s57, v13")
    p.a("v_and_b32 v14, 1, v3")
    p.a("v_cmp_eq_u32 s[76:77], 1, v14")
    p.a("s_waitcnt lgkmcnt(0)")
    for bi in range(8):
        for jj in range(4):
            c = "0" if jj == 0 else f"v[{32+4*bi}:{35+4*bi}]"
            r = 128 + 16 * bi + 4 * jj
            p.a(f"v_mfma_f32_16x16x32_bf16 v[{32+4*bi}:{35+4*bi}], v[{16+4*jj}:{19+4*jj}], v[{r}:{r+3}], {c}")
    for n in range(8 + vburst, 16):
        issue_v1(p, n)
    p.a("s_nop 7")
    for bi in range(8):
        d = 32 + 4 * bi
        p.a(f"v_cvt_pk_bf16_f32 v{d+2}, v{d}, v{d+1}")
    for bi in range(8):
        d = 32 + 4 * bi
        p.a(f"v_lshlrev_b32 v{d}, 16, v{d+2}")
        p.a(f"v_and_b32 v{d+1}, 0xffff0000, v{d+2}")
    for bi in range(8):
        d = 32 + 4 * bi
        p.a(f"v_mul_f32 v{d}, s62, v{d}")
        p.a(f"v_mul_f32 v{d+1}, s62, v{d+1}")
    for bi in range(8):
        d = 32 + 4 * bi
        p.a(f"v_cvt_pk_bf16_f32 v{d+2}, v{d}, v{d+1}")
    for bi in range(8):
        d = 32 + 4 * bi
        p.a(f"v_lshlrev_b32 v{d}, 16, v{d+2}")
        p.a(f"v_and_b32 v{d+1}, 0xffff0000, v{d+2}")
    for h, m in ((0, 16), (1, 18)):
        p.a(f"v_max3_f32 v{m}, v{32+h}, v{36+h}, v{40+h}")
        p.a(f"v_max3_f32 v{m+1}, v{44+h}, v{48+h}, v{52+h}")
    for h, m in ((0, 16), (1, 18)):
        p.a(f"v_max3_f32 v{m}, v{m}, v{56+h}, v{60+h}")
    for h, m in ((0, 16), (1, 18)):
        p.a(f"v_max_f32 v{m}, v{m}, v{m+1}")
    for sh in (8, 4, 2, 1):
        p.a("s_nop 0")
        for m in (16, 18):
            p.a(f"v_max_f32_dpp v{m}, v{m}, v{m} row_ror:{sh} row_mask:0xf bank_mask:0xf")
    for bi in range(8):
        d = 32 + 4 * bi
        p.a(f"v_sub_f32 v{d}, v{d}, v16")
        p.a(f"v_sub_f32 v{d+1}, v{d+1}, v18")
    for bi in range(8):
        d = 32 + 4 * bi
        p.a(f"v_mul_f32 v{d}, s63, v{d}")
        p.a(f"v_mul_f32 v{d+1}, s63, v{d+1}")
    for bi in range(8):
        d = 32 + 4 * bi
        p.a(f"v_exp_f32 v{d}, v{d}")
        p.a(f"v_exp_f32 v{d+1}, v{d+1}")
    for bi in range(8):
        d = 32 + 4 * bi
        p.a(f"v_cndmask_b32 v{d+2}, v{d}, v{d+1}, s[76:77]")
    for bi in range(8):
        d = 32 + 4 * bi
        p.a(f"v_cvt_pk_bf16_f32 v{d+2}, v{d+2}, v{d+2}")
    for bi in range(8):
        d = 32 + 4 * bi
        p.a(f"ds_write_b16 v13, v{d+2} offset:{(bi >> 1)*64 + (bi & 1)*8}")
    for h, l in ((0, 17), (1, 19)):
        p.a(f"v_add_f32 v{l}, v{32+h}, v{36+h}")
        p.a(f"v_add_f32 v{20+h}, v{40+h}, v{44+h}")
        p.a(f"v_add_f32 v{22+h}, v{48+h}, v{52+h}")
        p.a(f"v_add_f32 v{24+h}, v{56+h}, v{60+h}")
    for h, l in ((0, 17), (1, 19)):
        p.a(f"v_add_f32 v{l}, v{l}, v{20+h}")
        p.a(f"v_add_f32 v{22+h}, v{22+h}, v{24+h}")
    for h, l in ((0, 17), (1, 19)):
        p.a(f"v_add_f32 v{l}, v{l}, v{22+h}")
    for sh in (8, 4, 2, 1):
        p.a("s_nop 0")
        for l in (17, 19):
            p.a(f"v_add_f32_dpp v{l}, v{l}, v{l} row_ror:{sh} row_mask:0xf bank_mask:0xf")
    p.a("s_lshl_b32 s57, s3, 4")
    p.a("s_add_u32 s57, s57, %d" % ST)
    p.a("v_mov_b32 v14, s57")
    p.a("v_mov_b32 v240, v16")
    p.a("v_mov_b32 v241, v18")
    p.a("v_mov_b32 v246, %d" % FL)
    p.a("v_mov_b32 v247, 1")
    p.a("s_mov_b64 exec, 1")
    p.a("ds_write_b128 v14, v[16:19]")
    p.a("ds_add_u32 v246, v247 offset:8")
    p.a("s_mov_b64 exec, -1")
    p.a("s_waitcnt lgkmcnt(0)")
    for mm in range(4):
        p.a(f"ds_read_b128 v[{16+4*mm}:{19+4*mm}], v15 offset:{64*mm}")

    def pv(p, mm):
        def src(i, dw):
            return vreg(2 * mm + (i >> 2)) + 4 * (i & 3) + dw
        tbuf = [192, 196, 200, 204]

        def perms(j):
            tb = tbuf[j % 4]
            for d in range(4):
                p.a(f"v_perm_b32 v{tb+d}, v{src(2*d+1, j >> 1)}, v{src(2*d, j >> 1)}, {'s61' if j & 1 else 's60'}")

        def mf(j):
            tb = tbuf[j % 4]
            c = "0" if mm == 0 else f"v[{32+4*j}:{35+4*j}]"
            p.a(f"v_mfma_f32_16x16x32_bf16 v[{32+4*j}:{35+4*j}], v[{16+4*mm}:{19+4*mm}], v[{tb}:{tb+3}], {c}")
        perms(0)
        for j in range(8):
            if j + 1 < 8:
                perms(j + 1)
            else:
                p.a("s_nop 1")
            mf(j)

    done = 0
    first = True
    for n in range(16, 32):
        p.throttle(wv - 1)
        while done < 3 and not p.pending(f"v{2*done}") and not p.pending(f"v{2*done+1}") and 8 * done + 8 <= n:
            if first:
                p.a("s_waitcnt lgkmcnt(0)")
                first = False
            pv(p, done)
            done += 1
        issue_v1(p, n)
    while done < 3:
        p.wait(f"v{2*done+1}")
        if first:
            p.a("s_waitcnt lgkmcnt(0)")
            first = False
        pv(p, done)
        done += 1
    p.a("v_mov_b32 v14, %d" % ST)
    LBL("L_stwait")
    p.a("ds_read_b32 v247, v246 offset:8")
    for w in range(8):
        p.a(f"ds_read_b128 v[{208+4*w}:{211+4*w}], v14 offset:{16*w}")
    p.a("s_waitcnt lgkmcnt(8)")
    p.a("v_readfirstlane_b32 s57, v247")
    p.a("s_cmp_lt_u32 s57, 8")
    p.a("s_cbranch_scc1 L_stwait")
    p.a("s_waitcnt lgkmcnt(0)")
    for h in range(2):
        M = 244 + h
        p.a(f"v_max3_f32 v{M}, v{208+2*h}, v{212+2*h}, v{216+2*h}")
        p.a(f"v_max3_f32 v{M}, v{M}, v{220+2*h}, v{224+2*h}")
        p.a(f"v_max3_f32 v{M}, v{M}, v{228+2*h}, v{232+2*h}")
        p.a(f"v_max_f32 v{M}, v{M}, v{236+2*h}")
    for h in range(2):
        M = 244 + h
        for w in range(8):
            p.a(f"v_sub_f32 v{208+4*w+2*h}, v{208+4*w+2*h}, v{M}")
        p.a(f"v_sub_f32 v{240+h}, v{240+h}, v{M}")
    for h in range(2):
        for w in range(8):
            p.a(f"v_mul_f32 v{208+4*w+2*h}, s63, v{208+4*w+2*h}")
        p.a(f"v_mul_f32 v{240+h}, s63, v{240+h}")
    for h in range(2):
        for w in range(8):
            p.a(f"v_exp_f32 v{208+4*w+2*h}, v{208+4*w+2*h}")
        p.a(f"v_exp_f32 v{240+h}, v{240+h}")
    for h in range(2):
        p.a(f"v_mul_f32 v{242+h}, v{208+2*h}, v{209+2*h}")
    for w in range(1, 8):
        for h in range(2):
            p.a(f"v_fmac_f32 v{242+h}, v{208+4*w+2*h}, v{209+4*w+2*h}")
    for h in range(2):
        p.a(f"v_rcp_f32 v{242+h}, v{242+h}")
    p.a("s_nop 0")
    for h in range(2):
        p.a(f"v_mul_f32 v{242+h}, v{242+h}, v{240+h}")
    p.a("s_lshl_b32 s57, s3, 10")
    p.a("s_add_u32 s57, s57, %d" % OP)
    p.a("v_lshlrev_b32 v14, 5, v2")
    p.a("v_add_u32 v14, s57, v14")
    p.wait("v7")
    stamp(2)
    pv(p, 3)
    p.a("s_nop 4")
    for j in range(8):
        if j == 6:
            p.a("s_nop 3")
        for h in range(2):
            p.a(f"v_mul_f32 v{64+8*h+j}, v{242+h}, v{32+4*j+h}")
    p.a("s_mov_b64 exec, 0xffff")
    for h in range(2):
        for half in range(2):
            p.a(f"ds_write_b128 v14, v[{64+8*h+4*half}:{67+8*h+4*half}] offset:{512*h+16*half}")
    p.a("s_mov_b64 exec, -1")
    p.a("s_waitcnt lgkmcnt(0)")
    p.a("s_barrier")
    stamp(7)
    if "notail" in abl:
        p.a("s_branch L_fin")
    p.a("s_cmp_eq_u32 s3, 0")
    p.a("s_cbranch_scc1 L_reduce")
    p.a("s_cmp_ge_u32 s53, 9")
    p.a("s_cbranch_scc1 L_fin")
    p.a("s_cmp_ge_u32 s3, 4")
    p.a("s_cbranch_scc1 L_stageA")
    p.a("s_cmp_eq_u32 s3, 1")
    p.a("s_cbranch_scc1 L_final")
    p.a("s_branch L_fin")

    LBL("L_reduce")
    A("s_setprio 3")
    A("v_add_u32 v14, %d, v12" % OP)
    for w in range(8):
        A(f"ds_read_b128 v[{64+4*w}:{67+4*w}], v14 offset:{1024*w}")
    A("s_lshl_b32 s57, s52, 14")
    A("s_lshl_b32 s58, s53, 4")
    A("s_add_u32 s57, s57, s58")
    A("s_add_u32 s57, s57, %d" % WS_OM)
    A("v_lshrrev_b32 v13, 3, v1")
    A("v_lshlrev_b32 v13, 11, v13")
    A("v_and_b32 v15, 1, v1")
    A("v_lshl_add_u32 v13, v15, 10, v13")
    A("v_bfe_u32 v15, v1, 1, 2")
    A("v_lshl_add_u32 v13, v15, 8, v13")
    A("v_mov_b32 v17, s44")
    A("v_mov_b32 v19, s45")
    A("s_waitcnt lgkmcnt(6)")
    for r in range(4):
        A(f"v_add_f32 v{64+r}, v{64+r}, v{68+r}")
    A("s_waitcnt lgkmcnt(4)")
    for r in range(4):
        A(f"v_add_f32 v{72+r}, v{72+r}, v{76+r}")
    A("s_waitcnt lgkmcnt(2)")
    for r in range(4):
        A(f"v_add_f32 v{80+r}, v{80+r}, v{84+r}")
    for r in range(4):
        A(f"v_add_f32 v{64+r}, v{64+r}, v{72+r}")
    A("s_waitcnt lgkmcnt(0)")
    for r in range(4):
        A(f"v_add_f32 v{88+r}, v{88+r}, v{92+r}")
    for r in range(4):
        A(f"v_add_f32 v{80+r}, v{80+r}, v{88+r}")
    for r in range(4):
        A(f"v_add_f32 v{64+r}, v{64+r}, v{80+r}")
    A("v_cvt_pk_bf16_f32 v16, v64, v65")
    A("v_cvt_pk_bf16_f32 v18, v66, v67")
    stamp(8)
    if fast:
        A("s_cmp_eq_u32 s78, 0")
        A("s_cbranch_scc1 L_red_fast")
    A(f"buffer_store_dwordx4 v[16:19], v13, {SWS}, s57 offen sc1")
    A("s_branch L_fin")
    if fast:
        LBL("L_red_fast")
        A(f"buffer_store_dwordx4 v[16:19], v13, {SWS}, s57 offen{ast}")
        A("s_branch L_fin")

    def tagpieces():
        A("s_mul_i32 s82, s44, 0x85ebca77")
        A("s_lshr_b32 s80, s45, 20")
        A("s_bfe_u32 s81, s45, 0xc0008")
        A("s_add_u32 s82, s82, s84")
        A("s_bfe_u32 s83, s82, 0xc0008")
        A("s_lshr_b32 s82, s82, 20")

    LBL("L_stageA")
    A("s_sub_u32 s59, s3, 4")
    A("s_lshl_b32 s57, s52, 14")
    A("s_lshl_b32 s58, s59, 12")
    A("s_add_u32 s57, s57, s58")
    A("s_add_u32 s57, s57, %d" % WS_OM)

    def sa_loads():
        for ks in range(2):
            for h in range(2):
                r = 64 + 8 * ks + 4 * h
                A(f"buffer_load_dwordx4 v[{r}:{r+3}], v12, {SWS}, s57 offen offset:{2048*ks+1024*h}{ald}")
    sa_loads()
    A("v_lshrrev_b32 v14, 2, v2")
    A("v_lshl_add_u32 v14, v3, 3, v14")
    A("v_lshlrev_b32 v14, 7, v14")
    A("v_and_b32 v13, 3, v2")
    A("v_lshl_add_u32 v14, v13, 3, v14")
    A("s_lshl_b32 s58, s59, 13")
    A("s_add_u32 s58, s58, %d" % WOS)
    A("v_add_u32 v14, s58, v14")
    for t in range(4):
        for ks in range(2):
            for h in range(2):
                r = 128 + 8 * t + 4 * ks + 2 * h
                A(f"ds_read_b64_tr_b16 v[{r}:{r+1}], v14 offset:{4096*ks+512*h+32*t}")
    A("s_lshl_b32 s58, s53, 2")
    A("s_add_u32 s58, s58, s59")
    A("s_lshl_b32 s58, s58, 4")
    A("s_add_u32 s58, s58, s52")
    A("s_lshl_b32 s58, s58, 10")
    A("s_add_u32 s58, s58, %d" % WS_PM)
    A("s_mul_i32 s80, s59, 4608")
    A("v_mul_u32_u24 v20, 272, v3")
    A("v_lshl_add_u32 v20, v2, 4, v20")
    A("v_add_u32 v20, s80, v20")
    A("v_mul_u32_u24 v21, 272, v2")
    A("v_lshl_add_u32 v21, v3, 4, v21")
    A("s_lshl_b32 s80, s59, 6")
    A("v_add_u32 v21, s80, v21")
    tagpieces()
    A("v_mov_b32 v22, 0xfff")
    A("s_mov_b32 s64, 0")
    LBL("L_sa_poll")
    for gi in range(4):
        r = 64 + 4 * gi
        A(f"s_waitcnt vmcnt({3-gi})")
        A(f"v_xor_b32 v17, s44, v{r+1}")
        A(f"v_xor_b32 v18, s45, v{r+3}")
        if gi == 0:
            A("v_or_b32 v16, v17, v18")
        else:
            A("v_or3_b32 v16, v16, v17, v18")
        A(f"v_mov_b32 v{160+2*gi}, v{r}")
        A(f"v_mov_b32 v{161+2*gi}, v{r+2}")
    A("v_cmp_ne_u32 vcc, 0, v16")
    A("s_nop 1")
    A("s_cmp_eq_u64 vcc, 0")
    A("s_cbranch_scc1 L_sa_go")
    A("s_add_u32 s64, s64, 1")
    A("s_cmp_gt_u32 s64, %d" % SPIN_MAX)
    A("s_cbranch_scc1 L_sa_go")
    if asleep:
        A(f"s_sleep {asleep}")
    sa_loads()
    A("s_branch L_sa_poll")
    LBL("L_sa_go")
    stamp(8)
    A("s_waitcnt lgkmcnt(0)")
    for ks in range(2):
        for t in range(4):
            r = 128 + 8 * t + 4 * ks
            c = "0" if ks == 0 else f"v[{32+4*t}:{35+4*t}]"
            A(f"v_mfma_f32_16x16x32_bf16 v[{32+4*t}:{35+4*t}], v[{r}:{r+3}], v[{160+4*ks}:{163+4*ks}], {c}")
    A("s_nop 4")
    for t in range(4):
        if t:
            A("s_nop 0")
        A(f"ds_write_b128 v20, v[{32+4*t}:{35+4*t}] offset:{1088*t}")
    A("s_waitcnt lgkmcnt(0)")
    A("s_barrier")
    for w in range(4):
        A(f"ds_read_b128 v[{32+4*w}:{35+4*w}], v21 offset:{4608*w}")
    A("s_waitcnt lgkmcnt(2)")
    for r in range(4):
        A(f"v_add_f32 v{32+r}, v{32+r}, v{36+r}")
    A("s_waitcnt lgkmcnt(0)")
    for r in range(4):
        A(f"v_add_f32 v{40+r}, v{40+r}, v{44+r}")
    for r in range(4):
        A(f"v_add_f32 v{32+r}, v{32+r}, v{40+r}")
    for r in range(4):
        A(f"v_bfi_b32 v{32+r}, v22, s{80+r}, v{32+r}")
    A(f"buffer_store_dwordx4 v[32:35], v12, {SWS}, s58 offen{bst}")
    stamp(9)
    A("s_branch L_fin")

    LBL("L_final")
    A("s_mul_i32 s57, s52, 9")
    A("s_add_u32 s57, s57, s53")
    A("s_lshr_b32 s58, s57, 2")
    A("s_lshl_b32 s58, s58, 14")
    A("s_and_b32 s59, s57, 3")
    A("s_lshl_b32 s59, s59, 8")
    A("s_add_u32 s72, s58, s59")
    A("s_add_u32 s72, s72, %d" % WS_PM)
    A("s_add_u32 s73, s72, 4096")
    A("s_add_u32 s74, s72, 8192")
    A("s_add_u32 s75, s72, 12288")
    A("v_lshlrev_b32 v14, 10, v3")
    A("v_lshl_add_u32 v14, v2, 4, v14")
    A("s_and_b32 s58, s57, 15")
    A("s_mul_i32 s58, s58, 1152")
    A("s_lshr_b32 s59, s57, 4")
    A("s_lshl_b32 s59, s59, 7")
    A("s_add_u32 s58, s58, s59")
    A("v_lshlrev_b32 v15, 3, v2")
    tagpieces()
    A("s_mov_b32 s64, 0")
    A("s_mov_b32 s79, 0xf")
    A("s_barrier")
    LBL("L_fi_poll")
    for j in range(4):
        r = 64 + 4 * j
        A(f"s_bitcmp0_b32 s79, {j}")
        A(f"s_cbranch_scc1 L_fl{j}")
        A(f"buffer_load_dwordx4 v[{r}:{r+3}], v14, {SWS}, s{72+j} offen{bld}")
        LBL(f"L_fl{j}")
    A("s_waitcnt vmcnt(0)")
    for j in range(4):
        r = 64 + 4 * j
        A(f"s_bitcmp0_b32 s79, {j}")
        A(f"s_cbranch_scc1 L_fc{j}")
        A(f"v_xor_b32 v16, s80, v{r}")
        A(f"v_xor_b32 v17, s81, v{r+1}")
        A(f"v_xor_b32 v18, s82, v{r+2}")
        A(f"v_xor_b32 v19, s83, v{r+3}")
        A("v_or3_b32 v20, v16, v17, v18")
        A("v_or_b32 v20, v20, v19")
        A("v_and_b32 v20, 0xfff, v20")
        A("v_cmp_ne_u32 vcc, 0, v20")
        A("s_nop 1")
        A("s_cmp_lg_u64 vcc, 0")
        A(f"s_cbranch_scc1 L_fc{j}")
        for d in range(4):
            A(f"v_mov_b32 v{r+d}, v{16+d}")
        A(f"s_bitset0_b32 s79, {j}")
        LBL(f"L_fc{j}")
    A("s_cmp_eq_u32 s79, 0")
    A("s_cbranch_scc1 L_fi_go")
    if fsleep:
        A(f"s_sleep {fsleep}")
    A("s_add_u32 s64, s64, 1")
    A("s_cmp_le_u32 s64, %d" % SPIN_MAX)
    A("s_cbranch_scc1 L_fi_poll")
    LBL("L_fi_go")
    stamp(9)
    for d in range(4):
        A(f"v_add_f32 v{64+d}, v{64+d}, v{68+d}")
        A(f"v_add_f32 v{72+d}, v{72+d}, v{76+d}")
    for d in range(4):
        A(f"v_add_f32 v{20+d}, v{64+d}, v{72+d}")
    for d in range(4):
        A(f"v_add_f32 v{24+d}, v{64+d}, v{72+d}")
    for d in range(4):
        A(f"v_permlane32_swap_b32 v{20+d}, v{24+d}")
    A("s_nop 0")
    for d in range(4):
        A(f"v_add_f32 v{28+d}, v{20+d}, v{24+d}")
    for d in range(4):
        A(f"v_add_f32 v{20+d}, v{20+d}, v{24+d}")
    for d in range(4):
        A(f"v_permlane16_swap_b32 v{28+d}, v{20+d}")
    A("s_nop 0")
    for d in range(4):
        A(f"v_add_f32 v{20+d}, v{20+d}, v{28+d}")
    A("v_cvt_pk_bf16_f32 v16, v20, v21")
    A("v_cvt_pk_bf16_f32 v17, v22, v23")
    A("s_mov_b64 exec, 0xffff")
    A(f"buffer_store_dwordx2 v[16:17], v15, {SOUT}, s58 offen")
    A("s_mov_b64 exec, -1")
    A("s_cmp_lg_u32 s2, 0")
    A("s_cbranch_scc1 L_fin")
    A("v_mov_b32 v20, s44")
    A("v_mov_b32 v21, s84")
    A("v_mov_b32 v13, 0")
    A("s_mov_b32 s57, %d" % WS_EP)
    A("s_mov_b64 exec, 1")
    A(f"buffer_store_dwordx2 v[20:21], v13, {SWS}, s57 offen")
    A("s_mov_b64 exec, -1")
    A("s_branch L_fin")

    LBL("L_fallback")
    pf = Path(out)
    A("s_waitcnt lgkmcnt(0)")
    A("s_mov_b32 s46, 0")
    A("s_mov_b32 s83, 15")
    LBL("L_fb_loop")
    qtask_srd()
    q_loads(pf)
    A("s_waitcnt vmcnt(0)")
    q_compute(pf)
    A("s_waitcnt lgkmcnt(0)")
    A("s_barrier")
    A("s_cmp_lg_u32 s3, 0")
    A("s_cbranch_scc1 L_fb_next")
    q_publish(pf, "x")
    A("s_waitcnt vmcnt(0)")
    LBL("L_fb_next")
    A("s_barrier")
    A("s_add_u32 s46, s46, 1")
    A("s_cmp_lt_u32 s46, 16")
    A("s_cbranch_scc1 L_fb_loop")
    A("s_cmp_lg_u32 s3, 1")
    A("s_cbranch_scc1 L_fb_done")
    q_poll_load(pf)
    A("s_waitcnt vmcnt(0)")
    q_finish(pf)
    LBL("L_fb_done")
    A("s_waitcnt lgkmcnt(0)")
    A("s_mov_b32 s78, 1")
    A("s_barrier")
    for jj in range(4):
        A(f"ds_read_b128 v[{16+4*jj}:{19+4*jj}], v14 offset:{64*jj}")
    A("s_branch L_qk")

    LBL("L_fin")
    if dbgst:
        A("s_cmp_lg_u32 s3, 1")
        A("s_cbranch_scc1 L_end")
        A("s_cmp_ge_u32 s53, 9")
        A("s_cbranch_scc1 L_end")
        A("s_waitcnt vmcnt(0)")
        stamp(3)
        A("s_mov_b32 s84, s16")
        A("s_mov_b32 s85, s17")
        A("s_mov_b32 s86, 256")
        A("s_mov_b32 s87, 0x20000")
        A("s_waitcnt lgkmcnt(0)")
        A("s_not_b32 s57, s66")
        A("v_mov_b32 v12, 0")
        A("s_mov_b64 exec, 1")
        for k, r in enumerate(("s57", "s66", "s100", "s68", "s70", f"s{sreg(4)}", f"s{sreg(5)}", f"s{sreg(6)}", f"s{sreg(7)}", f"s{sreg(8)}", f"s{sreg(9)}")):
            A(f"v_mov_b32 v16, {r}")
            A(f"buffer_atomic_umax v16, v12, s[84:87], 0 offen offset:{4*k} sc1")
            A("s_nop 1")
        A("s_branch L_end")
    if stamps:
        A("s_waitcnt vmcnt(0)")
        stamp(3)
        A("s_lshl_b32 s57, s2, 3")
        A("s_add_u32 s57, s57, s3")
        A("s_lshl_b32 s57, s57, 4")
        A("s_add_u32 s84, s18, 0x%x" % WS_STAMP)
        A("s_addc_u32 s85, s19, 0")
        A("s_mov_b32 s86, 0x400000")
        A("s_mov_b32 s87, 0x20000")
        A("s_waitcnt lgkmcnt(0)")
        A("v_mov_b32 v8, s66")
        A("v_mov_b32 v9, s67")
        A("v_mov_b32 v10, s100")
        A("v_mov_b32 v11, s101")
        for i in (1, 2, 4, 5, 6, 7, 8, 9):
            A(f"s_sub_u32 s{sreg(i)}, s{sreg(i)}, s66")
        A("s_getreg_b32 s58, hwreg(HW_REG_XCC_ID)")
        A("v_mov_b32 v16, s58")
        A("v_mov_b32 v17, s68")
        A("v_mov_b32 v18, s70")
        A("v_mov_b32 v19, s64")
        for k, i in enumerate((4, 5, 6, 7)):
            A(f"v_mov_b32 v{20+k}, s{sreg(i)}")
        for k, i in enumerate((8, 9)):
            A(f"v_mov_b32 v{24+k}, s{sreg(i)}")
        A("v_mov_b32 v26, 0")
        A("v_mov_b32 v27, 0")
        A("v_mov_b32 v12, s57")
        A("s_mov_b32 s58, 0x100000")
        A("s_mov_b32 s59, 0x200000")
        A("s_mov_b32 s57, 0x300000")
        A("s_mov_b64 exec, 1")
        A("buffer_store_dwordx4 v[8:11], v12, s[84:87], 0 offen")
        A("buffer_store_dwordx4 v[16:19], v12, s[84:87], s58 offen")
        A("buffer_store_dwordx4 v[20:23], v12, s[84:87], s59 offen")
        A("buffer_store_dwordx4 v[24:27], v12, s[84:87], s57 offen")
    LBL("L_end")
    A("s_endpgm")
    out.append('.section .rodata,"a"')
    out.append(".p2align 6")
    out.append(f".amdhsa_kernel {KNAME}")
    out.append("  .amdhsa_next_free_vgpr 256")
    out.append("  .amdhsa_next_free_sgpr 102")
    out.append("  .amdhsa_accum_offset 256")
    out.append("  .amdhsa_group_segment_fixed_size 0")
    out.append("  .amdhsa_kernarg_size 64")
    out.append("  .amdhsa_user_sgpr_count 2")
    out.append("  .amdhsa_user_sgpr_kernarg_segment_ptr 1")
    out.append("  .amdhsa_system_sgpr_workgroup_id_x 1")
    out.append("  .amdhsa_float_denorm_mode_32 3")
    out.append(".end_amdhsa_kernel")
    return "\n".join(out) + "\n"


if __name__ == "__main__":
    import json
    C = dict(topcode=8, abl=("nocode",), wkinit=4, wk0=6, wk1=6, wv=6)
    V = {"k29a": dict(fsleep=0), "k29b": dict(fsleep=0, yprio=1), "k29c": dict(fsleep=0, yprio=1, w0add=2, w1add=2), "k29d": dict(fsleep=0, w0add=0, w1add=0)}
    for n, c in V.items():
        open(f"bench/{n}_st.s", "w").write(gen(stamps=True, **C, **c))
        open(f"variants/{n}.s", "w").write(gen(**C, **c))
```
